```python
import torch

def _softmax(x, axis=-1):
    return torch.softmax(x, dim=axis)
def _gelu(x):
    return torch.nn.functional.gelu(x, approximate="tanh")
def _silu(x):
    return torch.nn.functional.silu(x)
def _sigmoid(x):
    return torch.sigmoid(x)
def _layernorm(x, axis=-1, eps=1e-5):
    m = x.mean(dim=axis, keepdim=True)
    v = x.var(dim=axis, keepdim=True, unbiased=False)
    return (x - m) / torch.sqrt(v + eps)
def _scatter_add(tgt, idx, src, axis=0):
    return tgt.clone().index_add_(axis, idx, src)
def _segment_sum(src, seg, n):
    out = torch.zeros((n,) + src.shape[1:], dtype=src.dtype)
    return out.index_add_(0, seg, src)
def _pad(x, pw):
    flat = tuple(v for pair in reversed(pw) for v in pair)
    return torch.nn.functional.pad(x, flat)

kernel_name = 'sequential_preLN__spectral_fnet__dense_activation_relu__prompt'

def setup_inputs():

    _w = (lambda a: (lambda t: t.to(torch.bfloat16) if t.is_floating_point() else t)(torch.as_tensor(a)))
    def _A_setup():
        B, S, D = 1, 2048, 640
        ns = torch.arange(S)[:, None] * torch.arange(S)[None, :]
        nd = torch.arange(D)[:, None] * torch.arange(D)[None, :]
        Ws_re = torch.cos(-2.0 * torch.pi * ns / S).to(float)
        Ws_im = torch.sin(-2.0 * torch.pi * ns / S).to(float)
        Wd_re = torch.cos(-2.0 * torch.pi * nd / D).to(float)
        Wd_im = torch.sin(-2.0 * torch.pi * nd / D).to(float)
        return {
            "x": _w((lambda *s: torch.randn(*s, dtype=torch.bfloat16) * 0.05)(B, S, D)),
            "dft_seq_re": _w(Ws_re),
            "dft_seq_im": _w(Ws_im),
            "dft_hid_re": _w(Wd_re),
            "dft_hid_im": _w(Wd_im),
        }
    _A_in = _A_setup()

    def _B_setup():
        B, S, D, Dff = 1, 2048, 640, 1728
        return {
            "x": _w((lambda *s: torch.randn(*s, dtype=torch.bfloat16) * 0.05)(B, S, D)),
            "w1": _w((lambda *s: torch.randn(*s, dtype=torch.bfloat16) * 0.4)(D, Dff)),
            "w2": _w((lambda *s: torch.randn(*s, dtype=torch.bfloat16) * 0.4)(Dff, D)),
        }
    _B_in = _B_setup()

    return {
        "A_x": _A_in["x"],
        "A_dft_seq_re": _A_in["dft_seq_re"],
        "A_dft_seq_im": _A_in["dft_seq_im"],
        "A_dft_hid_re": _A_in["dft_hid_re"],
        "A_dft_hid_im": _A_in["dft_hid_im"],
        "B_x": _B_in["x"],
        "B_w1": _B_in["w1"],
        "B_w2": _B_in["w2"],
    }

def reference(A_x, A_dft_seq_re, A_dft_seq_im, A_dft_hid_re, A_dft_hid_im, B_x, B_w1, B_w2):
    def _A_ref(x, dft_seq_re, dft_seq_im, dft_hid_re, dft_hid_im):
        a = torch.einsum("bsd,ed->bse", x, dft_hid_re)
        b = torch.einsum("bsd,ed->bse", x, dft_hid_im)
        y = torch.einsum("ts,bse->bte", dft_seq_re, a) - torch.einsum("ts,bse->bte", dft_seq_im, b)
        return y

    def _B_ref(x, w1, w2):
        h = torch.einsum("bsd,df->bsf", x, w1)
        zero = torch.zeros_like(h)
        h = torch.maximum(h, zero)
        return torch.einsum("bsf,fd->bsd", h, w2)

    x = A_x
    h = x + _A_ref(_layernorm(x, axis=-1), A_dft_seq_re, A_dft_seq_im, A_dft_hid_re, A_dft_hid_im)
    h2 = h + _B_ref(_layernorm(h, axis=-1), B_w1, B_w2)
    return h2
```

```python
NAME = 'sequential_preLN__spectral_fnet__dense_activation_relu__prompt'
HEADER = ''';   kernarg: 0 A_x, 8 seq_re, 16 seq_im, 24 hid_re, 32 hid_im, 40 B_x, 48 w1, 56 w2, 64 out, 72 debug, 80 ws
'''
def kd(label, vgpr, sgpr=102, accum=None):
    if accum is None:
        accum = min(256, (vgpr + 3) // 4 * 4)
    return f'''.amdhsa_kernel {label}
  .amdhsa_next_free_vgpr {vgpr}
  .amdhsa_next_free_sgpr {sgpr}
  .amdhsa_accum_offset {accum}
  .amdhsa_group_segment_fixed_size 0
  .amdhsa_kernarg_size 88
  .amdhsa_user_sgpr_count 2
  .amdhsa_user_sgpr_kernarg_segment_ptr 1
  .amdhsa_system_sgpr_workgroup_id_x 1
.end_amdhsa_kernel
'''
def file_text(kernels, launches=None):
    s = HEADER
    for (label, grid, block, lds) in launches:
        s += f'; @launch kernel={label} grid=({grid},1,1) block=({block},1,1) lds={lds}\n'
    s += '.amdgcn_target "amdgcn-amd-amdhsa--gfx950"\n.text\n'
    for (label, body, vgpr, sgpr, accum) in kernels:
        s += f'.globl {label}\n.p2align 8\n.type {label},@function\n{label}:\n{body}\n'
    s += '.section .rodata,"a"\n'
    for (label, body, vgpr, sgpr, accum) in kernels:
        s += '.p2align 6\n' + kd(label, vgpr, sgpr, accum)
    return s
```

```python
import re, struct

def f2u(x):
    return struct.unpack('<I', struct.pack('<f', x))[0]

def flit(x):
    return hex(f2u(x))

_REG = re.compile(r'^(-|abs\()?([vas])(?:\[(\d+):(\d+)\]|(\d+))\)?$')

def regs_of(op):
    op = op.strip()
    if op in ('vcc', 'exec', 'm0', 'scc'):
        return [op]
    if op in ('vcc_lo', 'vcc_hi'):
        return ['vcc']
    if op in ('exec_lo', 'exec_hi'):
        return ['exec']
    m = _REG.match(op)
    if not m:
        return []
    k = m.group(2)
    if m.group(3) is not None:
        return [f'{k}{i}' for i in range(int(m.group(3)), int(m.group(4)) + 1)]
    return [f'{k}{m.group(5)}']

TRANS = ('v_exp_', 'v_log_', 'v_rcp_', 'v_rsq_', 'v_sqrt_', 'v_sin_', 'v_cos_')

class Ins:
    def __init__(self, text):
        self.text = text
        t = text.split(';')[0].strip()
        self.label = t.endswith(':')
        parts = t.split(None, 1)
        self.mn = parts[0] if parts else ''
        rest = parts[1] if len(parts) > 1 else ''
        rest = re.sub(r'\s\w+:\[[^\]]*\]', '', rest)
        ops = [o.strip() for o in rest.split(',')] if rest else []
        if ops:
            last = ops[-1].split()
            self.mods = last[1:]
            ops[-1] = last[0] if last else ''
        else:
            self.mods = []
        self.ops = ops
        mn = self.mn
        self.mfma = mn.startswith('v_mfma')
        self.valu = mn.startswith('v_') and not self.mfma
        self.trans = mn.startswith(TRANS)
        self.vmem = mn.startswith(('buffer_', 'global_'))
        self.ds = mn.startswith('ds_')
        self.smem = mn.startswith(('s_load', 's_memtime', 's_memrealtime'))
        self.dpp = '_dpp' in mn
        self.perm = mn.startswith('v_permlane')
        self.lds_dma = self.vmem and ('lds' in self.mods or '_lds_' in mn)
        R = lambda l: [r for o in l for r in regs_of(o)]
        w, r = [], []
        if self.label or not mn:
            pass
        elif self.vmem:
            if mn.startswith(('buffer_wbl2', 'buffer_inv')):
                pass
            elif self.lds_dma:
                r = R(ops) + ['m0']
            elif 'store' in mn or ('atomic' in mn and 'sc0' not in self.mods):
                r = R(ops)
            elif 'atomic' in mn:
                w, r = R(ops[:1]), R(ops)
            else:
                w, r = R(ops[:1]), R(ops[1:])
        elif self.ds:
            if 'write' in mn or mn.startswith('ds_add'):
                r = R(ops)
            else:
                w, r = R(ops[:1]), R(ops[1:])
        elif self.mfma:
            w, r = R(ops[:1]), R(ops[1:])
            self.srcc = set(R(ops[3:4])); self.srcab = set(R(ops[1:3]))
        elif self.valu:
            if self.perm or mn.startswith('v_swap'):
                w, r = R(ops), R(ops)
            else:
                w, r = R(ops[:1]), R(ops[1:])
                if mn.startswith(('v_fmac', 'v_dot2c', 'v_pk_fmac')) or self.dpp:
                    r += w
                if mn.startswith(('v_add_co', 'v_sub_co', 'v_addc_co')):
                    w = R(ops[:2]); r = R(ops[2:])
                if mn.startswith('v_cmpx'):
                    w += ['exec']
        elif mn.startswith('s_'):
            if mn.startswith(('s_cmp', 's_cbranch', 's_branch', 's_waitcnt', 's_nop', 's_barrier', 's_endpgm', 's_sleep', 's_setprio', 's_bitcmp')):
                r = R(ops)
            else:
                w, r = R(ops[:1]), R(ops[1:])
                if 'saveexec' in mn:
                    w += ['exec']
        self.w, self.r = set(w), set(r)
        self.states = 1
        if mn == 's_nop':
            self.states = int(ops[0], 0) + 1
        if self.label or not mn:
            self.states = 0
        self.wide_store = self.vmem and 'store' in mn and mn.endswith(('x3', 'x4'))

def need(p, c):
    n = 0
    isv = lambda s: {x for x in s if x[0] in 'va' and x != 'vcc'}
    iss = lambda s: {x for x in s if x[0] == 's' or x in ('vcc',)}
    if p.valu:
        pv = isv(p.w)
        if c.mfma and pv & c.r: n = max(n, 2)
        if c.perm and pv & c.r: n = max(n, 2)
        if c.dpp and pv & c.r: n = max(n, 2)
        if c.mn.startswith(('v_readfirstlane', 'v_readlane')) and pv & c.r: n = max(n, 1)
        if p.trans and c.valu and not c.trans and pv & c.r: n = max(n, 1)
        if p.trans and (c.vmem or c.ds) and pv & c.r: n = max(n, 1)
        ps = iss(p.w)
        if c.vmem and ps & c.r: n = max(n, 5)
        if c.valu and ps & c.r: n = max(n, 2)
        if c.mn.startswith(('v_readlane', 'v_writelane')) and ps & c.r: n = max(n, 4)
        if 'exec' in p.w:
            if c.mfma or c.perm or c.mn.startswith(('v_readfirstlane', 'v_readlane')): n = max(n, 4)
            if c.dpp: n = max(n, 5)
    if p.mn.startswith('v_dot'):
        if p.w & (c.r | c.w) and not (c.mn == p.mn and not (p.w & set(r for o in c.ops[1:3] for r in regs_of(o)))): n = max(n, 3)
    if p.mfma:
        big = '32x32' in p.mn
        if c.mfma:
            if p.w & c.srcab: n = max(n, 12 if big else 8)
            if p.w & c.srcc and not (p.w == c.srcc and (('32x32' in c.mn) == big)): n = max(n, 10 if big else 6)
            if p.w & c.w and not (p.w & c.srcc): n = max(n, 10 if big else 6)
        elif c.valu or c.vmem or c.ds:
            if p.w & (c.r | c.w): n = max(n, 12 if big else 8)
            if c.valu and p.srcc & c.w: n = max(n, 7 if big else 3)
    if p.wide_store or (p.ds and 'write' in p.mn):
        if c.valu and isv(p.r) & c.w and p.wide_store: n = max(n, 2)
    if p.mn.startswith('s_') and 'm0' in p.w and c.lds_dma: n = max(n, 1)
    return n

class Emit:
    def __init__(self):
        self.ins = []
        self.vm = []
        self.lg = []
        self.nops = 0
    def __call__(self, text, tag=None):
        for line in text.strip().split('\n'):
            line = line.strip()
            if not line or line.startswith(';'):
                continue
            i = Ins(line)
            if not i.label:
                gap, req = 0, 0
                for p in reversed(self.ins[-24:]):
                    req = max(req, need(p, i) - gap)
                    gap += p.states
                    if gap >= 20:
                        break
                if req > 0:
                    self.ins.append(Ins(f's_nop {req - 1}'))
                    self.nops += 1
            self.ins.append(i)
            if i.vmem: self.vm.append(tag)
            if i.ds: self.lg.append(tag)
            if i.mn == 's_waitcnt':
                m = re.search(r'vmcnt\((\d+)\)', line)
                if m: self.vm = self.vm[len(self.vm) - int(m.group(1)):] if int(m.group(1)) < len(self.vm) and int(m.group(1)) > 0 else ([] if int(m.group(1)) == 0 else self.vm)
                m = re.search(r'lgkmcnt\((\d+)\)', line)
                if m: self.lg = self.lg[len(self.lg) - int(m.group(1)):] if int(m.group(1)) < len(self.lg) and int(m.group(1)) > 0 else ([] if int(m.group(1)) == 0 else self.lg)
    def _n(self, lst, tags, cap):
        idx = [k for k, t in enumerate(lst) if t in tags]
        if not idx:
            return None
        return min(len(lst) - 1 - idx[-1], cap)
    def wait(self, vm=(), lg=()):
        vm = (vm,) if isinstance(vm, str) else tuple(vm)
        lg = (lg,) if isinstance(lg, str) else tuple(lg)
        a, b = self._n(self.vm, vm, 63), self._n(self.lg, lg, 15)
        s = ''
        if a is not None: s += f' vmcnt({a})'
        if b is not None: s += f' lgkmcnt({b})'
        if s: self('s_waitcnt' + s)
    def fence(self):
        self('s_nop 7')
    def text(self):
        return '\n'.join(('' if i.label else '    ') + i.text for i in self.ins)

def vr(base, n=1, k='v'):
    return f'{k}{base}' if n == 1 else f'{k}[{base}:{base + n - 1}]'
```

```python
import numpy as np
S, D, F = 2048, 640, 1728

def bf16r(a):
    a = np.ascontiguousarray(a, dtype=np.float32)
    u = a.view(np.uint32).astype(np.uint64)
    r = ((u + 0x7fff + ((u >> 16) & 1)) >> 16) << 16
    return r.astype(np.uint32).view(np.float32).reshape(a.shape)

def to_u16(a):
    return (bf16r(a).view(np.uint32) >> 16).astype(np.uint16)

def from_u16(u):
    return (u.astype(np.uint32) << 16).view(np.float32)

def q_of(p, half):
    return (16 * half) if p == 0 else (32 - p if half else p)

def row_of(p, rt, tl):
    half, w = rt // 4, rt % 4
    return q_of(p, half) + 32 * (16 * w + tl)

def unit_start(j):
    return 7 * j if j <= 12 else 84 + 6 * (j - 12)

def phase_a(x):
    m = x.mean(1, dtype=np.float64); v = (x.astype(np.float64) ** 2).mean(1) - m * m
    r = 1.0 / np.sqrt(v + 1e-5)
    xx = x.reshape(32, 64, 8, 80)
    mm = m.reshape(32, 64); rr = r.reshape(32, 64)
    V = np.zeros((32, 5, 5, 64, 2, 16), np.float32)
    s2 = np.arange(32); th = 2 * np.pi * np.outer(s2, s2) / 32
    c32, s32 = bf16r(np.cos(th)).astype(np.float64), bf16r(np.sin(th)).astype(np.float64)
    d1 = np.arange(80)
    for kap in range(5):
        a8 = 2 * np.pi * np.arange(8) * kap / 8
        wr, wi = bf16r(np.cos(a8)).astype(np.float64), bf16r(-np.sin(a8)).astype(np.float64)
        Gr = np.einsum('abcd,c->abd', xx, wr); Gi = np.einsum('abcd,c->abd', xx, wi)
        if kap == 0:
            Gr = Gr - 8 * bf16r(mm).astype(np.float64)[:, :, None]
        Gr = bf16r(Gr * rr[:, :, None]).astype(np.float64); Gi = bf16r(Gi * rr[:, :, None]).astype(np.float64)
        if kap in (0, 4):
            Gi = Gi * 0
        Tr = bf16r(np.einsum('ta,abd->tbd', c32, Gr) + np.einsum('ta,abd->tbd', s32, Gi)).astype(np.float64)
        Ti = bf16r(np.einsum('ta,abd->tbd', c32, Gi) - np.einsum('ta,abd->tbd', s32, Gr)).astype(np.float64)
        e = kap + 8 * np.arange(80)
        ph = 2 * np.pi * (np.outer(e, d1) % 640) / 640
        C, Sn = bf16r(np.cos(ph)).astype(np.float64), bf16r(np.sin(ph)).astype(np.float64)
        Vr = np.einsum('ed,tbd->tbe', C, Tr) + np.einsum('ed,tbd->tbe', Sn, Ti)
        Vi = np.einsum('ed,tbd->tbe', C, Ti) - np.einsum('ed,tbd->tbe', Sn, Tr)
        V[:, :, kap, :, 0, :] = bf16r(Vr).reshape(32, 64, 5, 16).transpose(0, 2, 1, 3)
        V[:, :, kap, :, 1, :] = bf16r(Vi).reshape(32, 64, 5, 16).transpose(0, 2, 1, 3)
    return V

def vbuf_of(V):
    out = np.zeros((16, 5, 5, 64, 2, 2, 16), np.float32); mask = np.zeros(out.shape, bool)
    for p in range(16):
        for half in range(2):
            q = q_of(p, half)
            for cls in range(5):
                for rho in range(5 if cls < 4 else 3):
                    lam = rho if (cls == 4 or half == 0) else 4 - rho
                    out[p, cls, lam, :, half] = V[q, rho, cls]; mask[p, cls, lam, :, half] = True
    return out, mask

def phase_b(x, V):
    h = np.zeros((S, D), np.float32)
    s1 = np.arange(64)
    for q in range(32):
        qm = (32 - q) % 32
        t = q + 32 * np.arange(64)
        ps = 2 * np.pi * (np.outer(t, s1) % 2048) / 2048
        C, Sn = bf16r(np.cos(ps)).astype(np.float64), bf16r(np.sin(ps)).astype(np.float64)
        for rho in range(5):
            for kap in range(8):
                direct = kap < 4 or (kap == 4 and rho <= 2)
                if direct:
                    y = C @ V[q, rho, kap, :, 0, :] + Sn @ V[q, rho, kap, :, 1, :]
                else:
                    Vm = V[qm, 4 - rho, 8 - kap][:, :, ::-1]
                    y = C @ Vm[:, 0, :] - Sn @ Vm[:, 1, :]
                cols = kap + 8 * (16 * rho + np.arange(16))
                h[np.ix_(t, cols)] = bf16r(x[np.ix_(t, cols)] + y)
    return h

def hbuf_of(h):
    out = np.zeros((16, 8, 80, 16, 8), np.float32)
    for p in range(16):
        for rt in range(8):
            rows = [row_of(p, rt, tl) for tl in range(16)]
            out[p, rt] = h[rows].reshape(16, 80, 8).transpose(1, 0, 2)
    return out

def w1col(u, i):
    return 32 * (u // 2) + 8 * (i // 4) + 4 * (u % 2) + i % 4

def w1buf_of(w1):
    cols = np.array([[w1col(u, i) for i in range(16)] for u in range(108)])
    return w1[:, cols].reshape(20, 4, 8, 108, 16).transpose(3, 0, 1, 4, 2).copy()

IDX_LO = [0, 1, 8, 12, 2, 3, 9, 4, 5, 10, 13, 6, 7, 11]
IDX_HI = [0, 1, 8, 2, 3, 9, 4, 5, 10, 6, 7, 11]
def pos_of(k):
    w = min(k // 14, 3); rel = k - 14 * w
    return 14 * w + (IDX_LO if w < 3 else IDX_HI)[rel]
POS = np.array([pos_of(k) for k in range(54)])

def w2col(tile, i):
    if tile < 4:
        return 32 * (tile // 2) + 8 * (i // 4) + 4 * (tile % 2) + i % 4
    return 64 + i

def w2buf_of(w2):
    out = np.zeros((8, 56, 5, 4, 16, 8), np.float32)
    for tile in range(5):
        for i in range(16):
            n = w2col(tile, i)
            for G in range(4):
                ks = 8 * G + np.arange(8)
                for c8 in range(8):
                    col = w2[:, 80 * c8 + n].reshape(54, 32)
                    out[c8, POS, tile, G, i, :] = col[:, ks]
    return out

def phase_c(h, w1):
    hd = h.astype(np.float64)
    m = hd.mean(1); v = (hd ** 2).mean(1) - m * m
    r = 1.0 / np.sqrt(v + 1e-5)
    u = hd @ w1.astype(np.float64) - np.outer(bf16r(m).astype(np.float64), w1.astype(np.float64).sum(0))
    return np.maximum(bf16r(u), 0), r

def h1buf_of(u):
    out = np.zeros((16, 8, 56, 4, 16, 8), np.float32)
    for p in range(16):
        for rt in range(8):
            rows = [row_of(p, rt, tl) for tl in range(16)]
            out[p, rt, POS] = u[rows].reshape(16, 54, 4, 8).transpose(1, 2, 0, 3)
    return out

def phase_d(h, u, r, w2):
    return bf16r(h + r[:, None] * (u.astype(np.float64) @ w2.astype(np.float64)))

def reference_exact(x, w1, w2):
    xd = x.astype(np.float64)
    z = (xd - xd.mean(1, keepdims=True)) / np.sqrt(xd.var(1, keepdims=True) + 1e-5)
    y = np.fft.fft2(z).real
    h = xd + y
    z2 = (h - h.mean(1, keepdims=True)) / np.sqrt(h.var(1, keepdims=True) + 1e-5)
    return h, h + np.maximum(z2 @ w1, 0) @ w2

if __name__ == '__main__':
    rng = np.random.default_rng(0)
    x = bf16r(bf16r(rng.standard_normal((S, D))) * 0.05)
    w1 = bf16r(bf16r(rng.standard_normal((D, F))) * 0.4); w2 = bf16r(bf16r(rng.standard_normal((F, D))) * 0.4)
    V = phase_a(x); h = phase_b(x, V)
    u, r = phase_c(h, w1); out = phase_d(h, u, r, w2)
    he, oe = reference_exact(x, w1, w2)
    print('h err max', np.abs(h - he).max(), 'rms', np.sqrt(((h - he) ** 2).mean()), 'h rms', np.sqrt((he ** 2).mean()))
    print('out err max', np.abs(out - oe).max(), 'rms', np.sqrt(((out - oe) ** 2).mean()), 'max', np.abs(oe).max())
```

```python
import sys
sys.path.insert(0, 'tools')
from emit import *
from asmlib import *
from model import IDX_LO, IDX_HI

W1B, W2B, VB, HB, SB, H1B = 0x100000, 0x400000, 0x700000, 0xB00000, 0xE00000, 0x1000000
WS_BYTES = 0x1800000
XB = 2048 * 1280
MF = 'v_mfma_f32_16x16x32_bf16'
ST, LD = 'sc1', 'sc1'
C_BAR, C_PRE1, C_PRE2, C_BC, C_CD = 0, 128, 160, 192, 256
OOB = 0x80000000
TSB = 0x40000
SPIN = 100000

CFG = dict(stamps=False, clk='s_memrealtime', dbg='', xpol='nt', wpol='nt', cpf=1, slp=2, slpi=6,
           xmix=9, pre0=1, pret=2, nopre=0, nov=0, vpol='sc1', ppol='sc1', dst='', p1=36, q1=5, q2=8, q3=10, q4=10, c2=1)

vLane, vG, vI, vL16, vOne, vT0, vT1, vT2, vT3 = 1, 2, 3, 4, 5, 6, 7, 8, 9

class K(Emit):
    nlab = 0
    def lab(self, s):
        K.nlab += 1
        return f'L{s}{K.nlab}'
    def stamp(self, n, grp=''):
        if CFG['stamps'] and (grp == CFG['dbg'] or (grp == '' and not (CFG['dbg'] and 9 <= n <= 12 and CFG['dbg'] != 'B'))):
            self(f'{CFG["clk"]} s[{64 + 2 * n}:{65 + 2 * n}]')
    def spin(self, v, vaddr, target, mask, srd='s[8:11]', slp=None):
        l, d = self.lab('poll'), self.lab('polld')
        self(f's_mov_b64 exec, {mask}\n s_mov_b32 s63, {SPIN}\n {l}:')
        self(f'buffer_load_dword v{v}, v{vaddr}, {srd}, 0 offen sc1')
        self(f's_sub_u32 s63, s63, 1\n s_cbranch_scc1 {d}\n s_waitcnt vmcnt(0)')
        self(f'v_cmp_ne_u32 vcc, {target}, v{v}\n s_cbranch_vccz {d}\n s_sleep {CFG["slp"] if slp is None else slp}\n s_branch {l}')
        self(f'{d}:\n s_waitcnt vmcnt(0)\n s_mov_b64 exec, -1')
    def peek(self, v, vaddr, tag, srd='s[8:11]'):
        self(f'buffer_load_dword v{v}, v{vaddr}, {srd}, 0 offen sc1', tag=tag)
    def confirm(self, v, vaddr, target, tag, srd='s[8:11]', slp=None):
        l = self.lab('ok')
        self.wait(vm=tag)
        keep = list(self.vm)
        self(f'v_cmp_ne_u32 vcc, {target}, v{v}\n s_cbranch_vccz {l}')
        self.spin(v, vaddr, target, 1, srd, slp)
        self(f'{l}:')
        self.vm = keep
    def arrive(self, vaddr, mask):
        self(f's_mov_b64 exec, {mask}\n buffer_atomic_add v{vOne}, v{vaddr}, s[8:11], 0 offen sc1\n s_mov_b64 exec, -1')
    def take(self, lst, k=10 ** 6):
        for _ in range(min(k, len(lst))):
            t, tag = lst.pop(0)
            self(t, tag=tag)

def nib(lst):
    return sum(x << (4 * k) for k, x in enumerate(lst))

def round_bf16(e, v, t):
    e(f'v_cvt_pk_bf16_f32 v{t}, v{v}, v{v}\n v_lshlrev_b32 v{v}, 16, v{t}')

class Mix:
    def __init__(self, e, side, period):
        self.e, self.side, self.period, self.n = e, side, period, 0
    def __call__(self, text):
        for line in text.strip().split('\n'):
            if line.strip():
                self.e(line)
                self.n += 1
                if self.n >= self.period and not line.strip().startswith(('s_cmp', 's_cselect')):
                    self.n = 0
                    self.e.take(self.side, 1)

A_MAT, A_G, A_PRE, A_X = 0, 40960, 51200, 73728
W_SLOT, W_EARLY = 18432, 18
R_BASE = 7 * W_SLOT
R_CS = R_BASE + 14336

def phase_a(e):
    X, F, M0, M1 = 16, 56, 64, 68
    GA, TA, TP, VA, PR = 72, 92, 132, 172, 204
    AF, GR = X, 92
    vXo, vGw, vGr, vSg, vS, vQ = 10, 11, 12, 13, 14, 15
    vS2, vRdy, vP0, vP1, vP4, vPs, vPa, vPb, vPd, vZ = 224, 225, 226, 227, 228, 229, 230, 231, 232, 233
    vD, vD4, vMa, vMb, vHi, vMid = 234, 238, 239, 240, 241, 242
    tmp, vXa, vPv, vPw = 244, VA, 222, 223
    inv_lo = [IDX_LO.index(k) for k in range(14)]
    inv_hi = [IDX_HI.index(k) for k in range(12)]
    e.stamp(0)
    e(f'''
    s_cmp_ge_u32 s2, 256
    s_cbranch_scc1 L_done
    s_load_dwordx2 s[4:5], s[0:1], 0
    s_load_dwordx4 s[24:27], s[0:1], 48
    s_load_dwordx2 s[8:9], s[0:1], 80
    s_load_dwordx4 s[28:31], s[0:1], 64
    v_lshrrev_b32 v{vT2}, 6, v0
    v_and_b32 v{vLane}, 63, v0
    v_readfirstlane_b32 s20, v{vT2}
    v_lshrrev_b32 v{vT0}, 3, v{vLane}
    v_and_b32 v{vT1}, 7, v{vLane}
    v_mul_u32_u24 v{vXo}, 81920, v{vT0}
    v_lshlrev_b32 v{vT2}, 1, v{vT0}
    v_and_b32 v{vT2}, 4, v{vT2}
    v_xor_b32 v{vT2}, v{vT2}, v{vT1}
    v_lshl_add_u32 v{vXo}, v{vT2}, 4, v{vXo}
    s_mov_b32 s6, {XB}
    s_mov_b32 s7, 0x20000
    s_mov_b32 s10, {WS_BYTES}
    s_mov_b32 s11, 0x20000
    s_mov_b32 s15, 0x20000
    s_and_b32 s21, s2, 7
    s_lshr_b32 s3, s2, 5
    s_lshl_b32 s3, s3, 3
    s_add_u32 s21, s21, s3
    s_bfe_u32 s22, s2, 0x20003
    s_mul_i32 s23, s21, 1280
    s_mul_i32 s3, s20, 655360
    s_add_u32 s23, s23, s3
    s_lshl_b32 s52, s20, 10
    s_add_u32 s53, s52, {A_X}
    s_mul_i32 s49, s2, 52429
    s_lshr_b32 s49, s49, 18
    s_mul_i32 s50, s49, 5
    s_sub_u32 s50, s2, s50
    s_lshl_b32 s50, s50, 2
    s_add_u32 s50, s50, s20
    s_mul_i32 s33, s50, {32 * 3456}
    s_lshl_b32 s34, s49, 7
    s_add_u32 s33, s33, s34
    s_mul_i32 s34, s49, 80
    s_add_u32 s34, s34, s50
    s_lshl_b32 s34, s34, 10
    s_add_u32 s34, s34, {W1B}
    s_add_u32 s49, s49, {C_PRE1}
    s_sub_u32 s35, s2, 135
    s_and_b32 s36, s35, 7
    s_lshr_b32 s37, s35, 3
    s_mov_b32 s42, {nib(inv_lo) & 0xffffffff}
    s_mov_b32 s43, {nib(inv_lo) >> 32}
    s_mov_b32 s44, {nib(inv_hi) & 0xffffffff}
    s_mov_b32 s45, {nib(inv_hi) >> 32}
    s_cmp_lt_u32 s20, 3
    s_cselect_b64 s[42:43], s[42:43], s[44:45]
    s_cselect_b32 s44, 14, 12
    s_lshl_b32 s41, s37, 2
    s_lshr_b64 s[42:43], s[42:43], s41
    s_and_b32 s42, s42, 15
    s_mul_i32 s40, s20, 14
    s_add_u32 s42, s42, s40
    s_mul_i32 s38, s42, {32 * 1280}
    s_mul_i32 s39, s36, 160
    s_add_u32 s38, s38, s39
    s_mul_i32 s39, s36, 56
    s_add_u32 s39, s39, s40
    s_add_u32 s39, s39, s37
    s_mul_i32 s39, s39, 5120
    s_add_u32 s39, s39, {W2B}
    s_lshl_b32 s50, s36, 2
    s_add_u32 s50, s50, s20
    s_add_u32 s50, s50, {C_PRE2}
    s_cmp_lt_u32 s37, s44
    s_cselect_b32 s45, 0, {OOB}
    s_movk_i32 s35, 1024
    s_movk_i32 s36, 1280
    s_cmp_lt_u32 s2, 135
    s_cselect_b32 s33, s33, s38
    s_cselect_b32 s34, s34, s39
    s_cselect_b32 s35, 20480, s35
    s_cselect_b32 s36, 3456, s36
    s_cselect_b32 s49, s49, s50
    s_cselect_b32 s39, 0, s45
    s_cselect_b32 s38, {OOB}, s45
    s_lshl_b32 s49, s49, 8
    s_or_b32 s49, s49, s39
    s_lshl_b32 s37, s36, 3
    s_mul_i32 s40, s20, 5120
    s_add_u32 s40, s40, {A_PRE}
    v_mul_u32_u24 v{vPv}, s36, v{vT0}
    v_lshl_add_u32 v{vPv}, v{vT1}, 4, v{vPv}
    v_or_b32 v{vPv}, s39, v{vPv}
    v_lshrrev_b32 v{vT0}, 1, v{vLane}
    v_mul_u32_u24 v{vPw}, s36, v{vT0}
    v_and_b32 v{vT0}, 1, v{vLane}
    v_lshl_add_u32 v{vPw}, v{vT0}, 4, v{vPw}
    v_or_b32 v{vPw}, s38, v{vPw}
    v_lshrrev_b32 v{vG}, 4, v{vLane}
    v_and_b32 v{vI}, 15, v{vLane}
    v_lshlrev_b32 v{vL16}, 4, v{vLane}
    v_mov_b32 v{vOne}, 1
    v_mov_b32 v{vZ}, 0
    s_mov_b32 s14, {640 * 3456}
    s_or_b32 s3, s2, s20
    s_cmp_lg_u32 s3, 0
    s_waitcnt lgkmcnt(0)
    s_cbranch_scc1 LA_nozero
    v_lshlrev_b32 v{vT1}, 8, v{vLane}
    ''')
    for n in range(8):
        e(f's_mov_b32 s3, {16384 * n}\n buffer_store_dword v{vZ}, v{vT1}, s[8:11], s3 offen sc1')
    e('LA_nozero:')
    e.vm = []
    side = [(f's_add_u32 m0, s53, {3968 * n}\n buffer_load_dwordx4 v{vXo}, s[4:7], s23 offen offset:{128 * n} {CFG["xpol"]} lds', 'x') for n in range(10)]
    e.take(side, 4)
    e('s_cmp_lt_u32 s2, 135\n s_cselect_b32 s12, s24, s26\n s_cselect_b32 s13, s25, s27')
    for n in range(4):
        side.append((f's_add_u32 m0, s40, {1024 * n}\n buffer_load_dwordx4 v{vPv}, s[12:15], s33 offen {CFG["wpol"]} lds\n s_add_u32 s33, s33, s37' if n < 3 else
                     f's_add_u32 m0, s40, {1024 * n}\n buffer_load_dwordx4 v{vPv}, s[12:15], s33 offen {CFG["wpol"]} lds\n s_mul_i32 s37, s37, 3\n s_sub_u32 s33, s33, s37', 'pre'))
    side.append((f's_add_u32 m0, s40, {4096 - 128}\n buffer_load_dwordx4 v{vPw}, s[12:15], s33 offen offset:128 {CFG["wpol"]} lds', 'pre'))
    prel = side[6 + CFG['pre0']:]
    del side[6 + CFG['pre0']:]
    mx = Mix(e, side, CFG['xmix'])
    e.stamp(1)
    mx(f'''
    v_lshrrev_b32 v{vHi}, 3, v{vI}
    s_add_u32 s41, s22, 1
    s_cmp_lt_u32 s22, 3
    s_cselect_b32 s41, s41, 0
    s_cselect_b32 s42, 0, 4
    s_cselect_b32 s43, 2, 0
    v_mul_u32_u24 v{vT1}, s42, v{vHi}
    v_add_u32 v{vT1}, s41, v{vT1}
    v_mul_u32_u24 v{vT2}, s43, v{vHi}
    v_mad_u32_u24 v{vT2}, v{vT1}, v{vG}, v{vT2}
    v_cvt_f32_u32 v{vT2}, v{vT2}
    v_mul_f32 v{vT2}, {flit(0.125)}, v{vT2}
    v_cos_f32 v{vT2}, v{vT2}
    v_and_b32 v{vT1}, 1, v{vT1}
    v_lshlrev_b32 v{vT1}, 15, v{vT1}
    v_cvt_pk_bf16_f32 v{tmp}, v{vT2}, 0
    v_mov_b32 v{tmp + 1}, 0
    v_xor_b32 v{tmp + 2}, v{vT1}, v{tmp}
    v_mov_b32 v{tmp + 3}, 0
    v_and_b32 v{vT1}, 3, v{vLane}
    v_lshlrev_b32 v{vT2}, 4, v{vT1}
    v_bfe_u32 v{vMid}, v{vI}, 2, 1
    v_lshlrev_b64 {vr(tmp, 2)}, v{vT2}, {vr(tmp, 2)}
    v_lshlrev_b64 {vr(tmp + 2, 2)}, v{vT2}, {vr(tmp + 2, 2)}
    v_cmp_eq_u32 vcc, 0, v{vMid}
    v_lshlrev_b32 v{vSg}, 31, v{vT0}
    v_lshrrev_b32 v{vT2}, 16, v{vSg}
    ''')
    for h in range(2):
        for k in range(2):
            mx(f'v_cndmask_b32 v{F + 4 * h + k}, 0, v{tmp + 2 * h + k}, vcc\n v_cndmask_b32 v{F + 4 * h + 2 + k}, v{tmp + 2 * h + k}, v{vZ}, vcc')
    mx(f'''
    v_or_b32 v{vSg}, v{vSg}, v{vT2}
    v_bfe_u32 v{vT1}, v{vI}, 1, 1
    v_lshrrev_b32 v{vT2}, 2, v{vI}
    v_lshl_add_u32 v{vT2}, s20, 2, v{vT2}
    v_mul_u32_u24 v{vPs}, 204800, v{vT2}
    v_lshl_add_u32 v{vPs}, v{vT1}, 6, v{vPs}
    v_lshl_add_u32 v{vPs}, v{vT0}, 5, v{vPs}
    v_sub_u32 v{vT3}, 32, v{vT2}
    v_cmp_eq_u32 vcc, 0, v{vT2}
    v_and_b32 v{tmp}, 1, v{vG}
    v_lshrrev_b32 v{tmp + 1}, 1, v{vG}
    v_cndmask_b32 v{vT3}, v{vT3}, 16, vcc
    v_cmp_eq_u32 vcc, 0, v{vT1}
    v_lshl_add_u32 v{vP4}, v{tmp}, 4, v{vPs}
    v_xor_b32 v{vT1}, v{vT1}, v{tmp + 1}
    v_cndmask_b32 v{vT2}, v{vT3}, v{vT2}, vcc
    v_lshl_add_u32 v{vP0}, v{vT1}, 15, v{vP4}
    v_lshl_add_u32 v{vP1}, v{vT1}, 14, v{vP4}
    v_lshl_add_u32 v{vP4}, v{tmp + 1}, 13, v{vP4}
    v_lshl_add_u32 v{vPs}, v{vG}, 3, v{vPs}
    v_lshlrev_b32 v{vGw}, 3, v{tmp}
    v_mad_u32_u24 v{vGw}, v{tmp + 1}, s54, v{vGw}
    v_lshlrev_b32 v{vS2}, 31, v{vT2}
    v_cvt_f32_u32 v{vT2}, v{vT2}
    v_mul_f32 v{vT2}, {flit(1 / 32)}, v{vT2}
    v_cvt_f32_u32 v{vT1}, v{vT0}
    v_fmaak_f32 v{vT1}, {flit(0.25)}, v{vT1}, {flit(0.25)}
    v_lshlrev_b32 v{vT3}, 2, v{vG}
    v_cvt_f32_u32 v{vD4}, v{vT3}
    v_fma_f32 v{tmp}, v{vT2}, v{vD4}, v{vT1}
    v_add_f32 v{tmp + 1}, v{tmp}, v{vT2}
    v_add_f32 v{tmp + 2}, v{tmp + 1}, v{vT2}
    v_add_f32 v{tmp + 3}, v{tmp + 2}, v{vT2}
    v_lshrrev_b32 v{vT1}, 16, v{vS2}
    v_or_b32 v{vS2}, v{vS2}, v{vT1}
    '''.replace('v_mad_u32_u24 v%d, v%d, s54' % (vGw, tmp + 1), 's_movk_i32 s54, 5120\n v_mad_u32_u24 v%d, v%d, s54' % (vGw, tmp + 1)))
    for rr in range(4):
        mx(f'v_sin_f32 v{tmp + 4 + rr}, v{tmp + rr}\n v_cos_f32 v{tmp + 8 + rr}, v{tmp + rr}')
    for k in range(2):
        mx(f'v_cvt_pk_bf16_f32 v{M0 + k}, v{tmp + 4 + 2 * k}, v{tmp + 5 + 2 * k}')
        mx(f'v_cvt_pk_bf16_f32 v{M1 + k}, -v{tmp + 8 + 2 * k}, -v{tmp + 9 + 2 * k}')
    for k in range(2):
        mx(f'v_xor_b32 v{M0 + 2 + k}, v{vS2}, v{M0 + k}\n v_xor_b32 v{M1 + 2 + k}, v{vS2}, v{M1 + k}')
    mx(f'''
    v_lshl_add_u32 v{vT0}, s20, 4, v{vT3}
    v_cvt_f32_u32 v{vD}, v{vT0}
    v_add_f32 v{vD + 1}, 1.0, v{vD}
    v_add_f32 v{vD + 2}, 2.0, v{vD}
    v_add_f32 v{vD + 3}, 1.0, v{vD + 2}
    s_add_u32 s42, s20, 64
    v_add_u32 v{vT0}, s42, v{vT3}
    v_cvt_f32_u32 v{vD4}, v{vT0}
    s_bfe_u32 s42, s52, 0x1000b
    s_lshl_b32 s42, s42, 10
    s_and_b32 s43, s20, 1
    s_lshl_b32 s43, s43, 3
    s_add_u32 s42, s42, s43
    v_add_u32 v{vMa}, s42, v{vL16}
    v_lshl_add_u32 v{vMb}, s20, 1, v{vL16}
    v_and_b32 v{vT0}, 7, v{vLane}
    v_lshl_add_u32 v{vT1}, s20, 3, v{vT0}
    s_movk_i32 s54, 160
    v_mad_u32_u24 v{vGw}, v{vT1}, s54, v{vGw}
    v_lshl_add_u32 v{vGw}, v{vHi}, 4, v{vGw}
    v_lshrrev_b32 v{vT1}, 2, v{vLane}
    v_mul_u32_u24 v{vGr}, 160, v{vT1}
    v_and_b32 v{vT2}, 3, v{vLane}
    v_lshl_add_u32 v{vGr}, v{vT2}, 3, v{vGr}
    v_and_b32 v{vT1}, 3, v{vT1}
    v_lshl_add_u32 v{vT1}, v{vG}, 3, v{vT1}
    v_lshl_add_u32 v{vPa}, v{vT1}, 7, s40
    v_lshl_add_u32 v{vPa}, v{vT2}, 4, v{vPa}
    v_lshl_add_u32 v{vPb}, v{vT1}, 5, s40
    v_lshl_add_u32 v{vPb}, v{vT2}, 3, v{vPb}
    v_or_b32 v{vPd}, s39, v{vL16}
    v_lshl_add_u32 v{vT1}, v{vT0}, 7, s52
    v_lshlrev_b32 v{vT0}, 5, v{vT0}
    v_and_b32 v{vT0}, 0x40, v{vT0}
    v_mad_u32_u24 v{vT2}, v{vG}, 10, v{vHi}
    s_movk_i32 s54, {A_X >> 5}
    v_lshl_add_u32 v{vT2}, v{vT2}, 4, s54
    s_movk_i32 s54, 0x70
    s_movk_i32 s55, 0xfff
    ''')
    for m in range(5):
        if m:
            mx(f'v_add_u32 v{vT2}, 32, v{vT2}')
        mx(f'''
        v_xor_b32 v{vT3}, v{vT0}, v{vT2}
        v_lshlrev_b32 v{tmp}, 5, v{vT2}
        v_and_or_b32 v{vT3}, v{vT3}, s54, v{vT1}
        v_bfi_b32 v{vXa + m}, s55, v{vT3}, v{tmp}
        ''')
    e.take(side)
    def code_prefetch():
        lp, ln = e.lab('pc'), e.lab('nopf')
        e(f'''
        s_getpc_b64 s[46:47]
        {lp}:
        s_bfe_u32 s3, s2, 0x30003
        v_lshl_add_u32 v{vT0}, v0, 3, s3
        v_lshlrev_b32 v{vT0}, 7, v{vT0}
        v_cmp_gt_u32 vcc, L_done - {lp}, v{vT0}
        s_and_saveexec_b64 s[44:45], vcc
        s_cbranch_execz {ln}
        global_load_dword a255, v{vT0}, s[46:47]
        {ln}:
        s_mov_b64 exec, -1
        ''')
        e.vm.pop()
    e('s_mov_b32 s56, s30\n s_mov_b32 s57, s31\n s_mov_b32 s58, 256\n s_mov_b32 s59, 0x20000\n s_mov_b32 s51, 0x3f803f80')
    e.stamp(9, 'A')
    def body(sig3):
        tl = [(0, 0, 64, 8), (0, 4, 64, 8), (0, 16, 32, 8), (0, 20, 32, 8), (0, 32, 8, 4)]
        tl += [(4, 0, 16, 8), (4, 4, 16, 8), (4, 32, 8, 4)] if sig3 else []
        last = None
        for a, (ko, base, dhi, dmid) in enumerate(tl):
            if (dhi, dmid) != last:
                last = (dhi, dmid)
                e(f'''
                v_and_b32 v{vT1}, 3, v{vI}
                v_mad_u32_u24 v{vT1}, v{vMid}, {dmid}, v{vT1}
                v_mad_u32_u24 v{vT1}, v{vHi}, {dhi}, v{vT1}
                v_lshl_add_u32 v{vT1}, v{vT1}, 3, s41
                v_cvt_f32_u32 v{vT1}, v{vT1}
                v_mul_f32 v{vT1}, {flit(1 / 640)}, v{vT1}
                ''')
            e(f'v_add_f32 v{vT0}, {flit((ko + 8 * base) / 640)}, v{vT1}')
            for r in range(0, 4, 2):
                e(f'v_pk_mul_f32 {vr(tmp + r, 2)}, {vr(vD + r, 2)}, {vr(vT0, 2)} op_sel_hi:[1,0]')
            e(f'v_mul_f32 v{vT0}, v{vT0}, v{vD4}')
            for r in range(4):
                e(f'v_cos_f32 v{tmp + 4 + r}, v{tmp + r}\n v_sin_f32 v{tmp + 8 + r}, v{tmp + r}')
            e(f'v_cos_f32 v{vT2}, v{vT0}\n v_sin_f32 v{vT3}, v{vT0}')
            c0 = TA + 6 * (a % 2)
            for k in range(2):
                e(f'v_cvt_pk_bf16_f32 v{c0 + k}, v{tmp + 4 + 2 * k}, v{tmp + 5 + 2 * k}')
                e(f'v_cvt_pk_bf16_f32 v{c0 + 2 + k}, v{tmp + 8 + 2 * k}, v{tmp + 9 + 2 * k}')
            e(f'v_cvt_pk_bf16_f32 v{c0 + 4}, v{vT2}, v{vT3}')
            o = A_MAT + 5120 * a
            e(f'ds_write2st64_b64 v{vMa}, {vr(c0, 2)}, {vr(c0 + 2, 2)} offset0:{o // 512} offset1:{(o + 2048) // 512}')
            e(f'ds_write_b16 v{vMb}, v{c0 + 4} offset:{o + 4096}\n ds_write_b16_d16_hi v{vMb}, v{c0 + 4} offset:{o + 4096 + 8}')
            if a in (0, 4):
                e.stamp(10 + a // 4, 'A')
            if a == CFG['pret']:
                e.take(list(prel))
                if CFG['cpf']:
                    code_prefetch()
            if a == 3:
                l = e.lab('rdy')
                keep = list(e.vm)
                e(f's_or_b32 s3, s2, s20\n s_cmp_lg_u32 s3, 0\n s_cbranch_scc1 {l}')
                e(f's_waitcnt vmcnt({15 + CFG["cpf"]})\n s_mov_b64 exec, 1\n buffer_store_dword v{vOne}, v{vZ}, s[56:59], 0 offen sc1\n s_mov_b64 exec, -1\n s_waitcnt vmcnt(0)')
                e(f'{l}:')
                e.vm = keep
        e('s_waitcnt lgkmcnt(0)\n s_barrier')
        e.stamp(2)
        e.wait(vm='x')
        e.stamp(3)
        order = [(m, h) for m in range(5) for h in range(2)]
        xr = lambda m, h: X + 8 * m + 4 * h
        for (m, h) in order:
            e(f'ds_read_b128 {vr(xr(m, h), 4)}, v{vXa + m} offset:{20480 * h}', tag=f'x{m}{h}')
        e(f'v_mov_b32 v{vS}, 0\n v_mov_b32 v{vS2}, 0')
        for n, (m, h) in enumerate(order):
            x = xr(m, h)
            e.wait(lg=f'x{m}{h}')
            e(f'{MF} {vr(GR, 4)}, {vr(x, 4)}, {vr(x, 4)}, {vr(GR, 4) if n else 0}')
            e(f'v_dot2_f32_bf16 v{vS}, v{x}, s51, v{vS}\n v_dot2_f32_bf16 v{vS2}, v{x + 1}, s51, v{vS2}')
            e(f'{MF} {vr(GA + 4 * m, 4)}, {vr(F + 4 * h, 4)}, {vr(x, 4)}, {vr(GA + 4 * m, 4) if h else 0}')
            e(f'v_dot2_f32_bf16 v{vS}, v{x + 2}, s51, v{vS}\n v_dot2_f32_bf16 v{vS2}, v{x + 3}, s51, v{vS2}')
        e.stamp(4)
        e.wait(vm='pre')
        gaps = []
        for a in range(5):
            for v in range(2):
                gaps.append((f'ds_read_b64_tr_b16 {vr(PR + 4 * a + 2 * v, 2)}, v{vPa} offset:{64 * (a >> 1) + 8 * (a & 1) + 512 * v}' if a < 4 else
                             f'ds_read_b64_tr_b16 {vr(PR + 4 * a + 2 * v, 2)}, v{vPb} offset:{4096 + 128 * v}', 'p'))
        mats = [(f'ds_read_b128 {vr(20 * a + 4 * n, 4, "a")}, v{vL16} offset:{A_MAT + 5120 * a + 1024 * n}', f'm{a}')
                for a in range(len(tl)) for n in range(5)]
        mg = Mix(e, gaps, 1)
        mg(f'''
        v_sub_u32 v{vT0}, v{vI}, v{vG}
        v_add_f32 v{vS}, v{vS}, v{vS2}
        v_mad_i32_i24 v{vT0}, v{vG}, -3, v{vT0}
        v_cmp_eq_u32 vcc, 0, v{vT0}
        v_cmp_eq_u32 s[42:43], 1, v{vT0}
        v_cmp_eq_u32 s[44:45], 2, v{vT0}
        v_cndmask_b32 v{vQ}, 0, v{GR}, vcc
        v_cmp_eq_u32 vcc, 3, v{vT0}
        v_cndmask_b32 v{vQ}, v{vQ}, v{GR + 1}, s[42:43]
        v_cndmask_b32 v{vQ}, v{vQ}, v{GR + 2}, s[44:45]
        v_cndmask_b32 v{vQ}, v{vQ}, v{GR + 3}, vcc
        ''')
        e.take(gaps)
        mg = Mix(e, mats, 2)
        mg(f'''
        v_permlane32_swap_b32 v{vS}, v{vQ}
        v_add_f32 v{vS}, v{vS}, v{vQ}
        v_mov_b32 v{vQ}, v{vS}
        v_permlane16_swap_b32 v{vS}, v{vQ}
        v_add_f32 v{vS}, v{vS}, v{vQ}
        v_add_f32_dpp v{vS}, v{vS}, v{vS} row_ror:8 row_mask:0xf bank_mask:0xf
        v_mov_b32 v{vQ}, v{vS}
        v_permlane32_swap_b32 v{vS}, v{vQ}
        v_mul_f32 v{vS}, {flit(1 / 640)}, v{vS}
        v_mul_f32 v{vQ}, {flit(1 / 640)}, v{vQ}
        v_fma_f32 v{vQ}, -v{vS}, v{vS}, v{vQ}
        v_max_f32 v{vQ}, 0, v{vQ}
        v_add_f32 v{vQ}, {flit(1e-5)}, v{vQ}
        v_rsq_f32 v{vQ}, v{vQ}
        ''')
        if sig3:
            e(f'v_cmp_gt_u32 vcc, 32, v{vLane}')
            round_bf16(e, vS, vS2)
            e(f'v_mul_f32 v{vS}, {flit(-8.0)}, v{vS}\n v_mul_f32 v{vS}, v{vS}, v{vQ}\n v_cndmask_b32 v{vS}, 0, v{vS}, vcc')
        for m in range(5):
            g = GA + 4 * m
            for k in range(2):
                if sig3:
                    e(f'v_pk_fma_f32 {vr(g + 2 * k, 2)}, {vr(g + 2 * k, 2)}, {vr(vS, 2)}, {vr(vS, 2)} op_sel:[0,1,0] op_sel_hi:[1,1,0]')
                else:
                    e(f'v_pk_mul_f32 {vr(g + 2 * k, 2)}, {vr(g + 2 * k, 2)}, {vr(vS, 2)} op_sel:[0,1] op_sel_hi:[1,1]')
            e(f'v_cvt_pk_bf16_f32 v{g}, v{g}, v{g + 1}\n v_cvt_pk_bf16_f32 v{g + 1}, v{g + 2}, v{g + 3}')
            e(f'ds_write_b64 v{vGw}, {vr(g, 2)} offset:{A_G + 32 * m}', tag='gw')
        e.wait(lg='p')
        pst = []
        for a in range(5):
            pst.append(((f'v_or_b32 v{vPd}, s38, v{vPd}\n' if a == 4 else '') +
                        f'buffer_store_dwordx4 {vr(PR + 4 * a, 4)}, v{vPd}, s[8:11], s34 offen {CFG["ppol"]}\n s_add_u32 s34, s34, s35', 'prest'))
        if CFG['nopre']: pst = []
        e.take(pst, 2)
        e.wait(lg='gw')
        e('s_barrier')
        e.stamp(5)
        for tau in range(5):
            for c in range(2):
                b = AF + 8 * tau + 4 * c
                for u in range(2):
                    e(f'ds_read_b64_tr_b16 {vr(b + 2 * u, 2)}, v{vGr} offset:{A_G + 5120 * c + 2560 * u + 32 * tau}', tag=f'g{tau}{c}')
        e.take(pst)
        e.peek(vRdy, vZ, 'rdy', 's[56:59]')
        for tau in range(5):
            for c in range(2):
                b = AF + 8 * tau + 4 * c
                e.wait(lg=f'g{tau}{c}')
                if sig3:
                    e(f'{MF} {vr(TA + 20 * c + 4 * tau, 4)}, {vr(b, 4)}, {vr(M0, 4)}, 0')
                else:
                    t = vr(TA + 4 * tau, 4)
                    e(f'{MF} {t}, {vr(b, 4)}, {vr(M1 if c else M0, 4)}, {t if c else 0}')
                if tau >= 2:
                    e.take(mats, 1)
        e(f's_lshl_b32 s42, s21, 7\n s_add_u32 s42, s42, {VB}\n s_mul_i32 s3, s41, 40960\n s_add_u32 s42, s42, s3')
        def pack(s):
            out = []
            for tau in range(5):
                t = TA + 20 * s + 4 * tau
                for k in range(2):
                    out.append((f'v_cvt_pk_bf16_f32 v{TP + 20 * s + (2 * tau if tau < 4 else 16) + k}, v{t + 2 * k}, v{t + 2 * k + 1}', None))
            for k in range(10):
                src, dst = (k, 8 + k) if k < 8 else (8 + k, 10 + k)
                out.append((f'v_xor_b32_dpp v{TP + 20 * s + dst}, v{TP + 20 * s + src}, v{vSg} quad_perm:[1,0,3,2] row_mask:0xf bank_mask:0xf', None))
            return out
        p0 = pack(0)
        e.take(p0, 8)
        e.stamp(6)
        groups = [((0, 1), 0, vP0, 0), ((2, 3), 0, vP1, 8192), ((4,), 0, vPs, 16384)]
        if sig3:
            groups += [((5, 6), 1, vP4, 4 * 40960), ((7,), 1, vPs, 4 * 40960 + 16384)]
        def finish(g):
            tls, s, va, so = g
            o = VA + 4 * tls[0]
            out = []
            for n, a in enumerate(tls):
                for k in range(2):
                    out.append((f'v_cvt_pk_bf16_f32 v{o + 2 * n + k}, v{VA + 4 * a + 2 * k}, v{VA + 4 * a + 2 * k + 1}', None))
            out.append((f's_add_u32 s43, s42, {so}\n buffer_store_dwordx{2 * len(tls)} {vr(o, 2 * len(tls))}, v{va}, s[8:11], s43 offen {CFG["vpol"]}', 'vst'))
            if CFG['nov']: out.pop()
            return out
        fill = p0 + (pack(1) if sig3 else [])
        for gi, g in enumerate(groups):
            seq = [(a, n) for n in range(5) for a in g[0]]
            for k, (a, n) in enumerate(seq):
                d = vr(VA + 4 * a, 4)
                while any(t == f'm{a}' for _, t in mats):
                    e.take(mats, 1)
                e.wait(lg=f'm{a}')
                e(f'{MF} {d}, {vr(20 * a + 4 * n, 4, "a")}, {vr(TP + 20 * g[1] + 4 * n, 4)}, {d if n else 0}')
                if k == 2 and gi > 0:
                    fill = finish(groups[gi - 1]) + fill
                if gi == 0 and k < 4:
                    e.take(fill, 3)
                elif fill:
                    e.take(fill, 1); e.take(mats, 1)
                else:
                    e.take(mats, 2)
            if gi == 2:
                e.take(fill)
        e.take(fill + finish(groups[-1]))
        e.stamp(7)
        e.confirm(vRdy, vZ, 1, 'rdy', 's[56:59]')
    e('s_cmp_eq_u32 s22, 3\n s_cbranch_scc1 LA_sig3')
    vm0, lg0 = list(e.vm), list(e.lg)
    body(False)
    e('s_branch LA_end\n LA_sig3:')
    e.vm, e.lg = list(vm0), list(lg0)
    body(True)
    e('LA_end:')
    e(f'v_mov_b32 v{vT0}, s49')
    e.arrive(vT0, 1)

LW, W2V = 160, 176
def w2reg(n, a):
    if n < 4:
        return vr(160 + 20 * n + 4 * a, 4, 'a')
    if n < 8:
        return vr(W2V + 20 * (n - 4) + 4 * a, 4)
    r = 48 + 20 * (n - 8) + 4 * a
    return vr(r, 4, 'a') if r < 160 else vr(132 + r - 160, 4)
def ringreg(n, rt):
    s = n % 4
    return vr(240 + 4 * rt, 4, 'a') if s == 0 else vr(16 * (s - 1) + 4 * rt, 4, 'a')
def w2_loads(n):
    return [((f's_add_u32 s62, s46, {5120 * n + 4096 * (a // 4)}\n' if a % 4 == 0 else '') +
             f'buffer_load_dwordx4 {w2reg(n, a)}, v{vL16}, s[8:11], s62 offen offset:{1024 * (a % 4)} {LD}', f'w2_{n}') for a in range(5)]

vPre1, vPre2, vBarA, vPk1, vTid16, vPk2 = 10, 11, 12, 13, 14, 15
def after_a(e):
    e(f'''
    s_bfe_u32 s60, s2, 0x20001
    s_lshl_b32 s60, s60, 2
    s_lshr_b32 s3, s2, 6
    s_add_u32 s60, s60, s3
    s_and_b32 s61, s2, 1
    s_lshl_b32 s61, s61, 3
    s_bfe_u32 s44, s2, 0x30003
    s_add_u32 s61, s61, s44
    s_bfe_u32 s3, s2, 0x40003
    v_lshl_add_u32 v{vBarA}, v{vLane}, 4, s3
    v_lshlrev_b32 v{vBarA}, 8, v{vBarA}
    s_mul_i32 s30, s61, 7
    s_mul_i32 s3, s61, 6
    s_add_u32 s3, s3, 12
    s_cmp_le_u32 s61, 12
    s_cselect_b32 s30, s30, s3
    s_and_b32 s31, s30, 1
    s_add_u32 s32, s30, s31
    s_add_u32 s33, s30, 6
    s_cmp_eq_u32 s31, 1
    s_cselect_b32 s33, s30, s33
    s_min_u32 s33, s33, 107
    s_mul_i32 s32, s32, 20480
    s_add_u32 s32, s32, {W1B}
    s_mul_i32 s33, s33, 20480
    s_add_u32 s33, s33, {W1B}
    s_lshr_b32 s34, s30, 2
    s_add_u32 s34, s34, {C_PRE1}
    v_min_u32 v{vPre1}, 2, v{vLane}
    v_add_u32 v{vPre1}, s34, v{vPre1}
    v_min_u32 v{vPre1}, {C_PRE1 + 26}, v{vPre1}
    v_lshlrev_b32 v{vPre1}, 8, v{vPre1}
    s_lshl_b32 s34, s44, 2
    s_add_u32 s34, s34, s20
    s_add_u32 s34, s34, {C_PRE2}
    s_lshl_b32 s34, s34, 8
    v_mov_b32 v{vPre2}, s34
    s_mul_i32 s46, s44, 56
    s_mul_i32 s3, s20, 14
    s_add_u32 s46, s46, s3
    s_mul_i32 s46, s46, 5120
    s_add_u32 s46, s46, {W2B}
    s_cmp_eq_u32 s20, 3
    s_cselect_b32 s47, 12, 14
    v_lshlrev_b32 v{vTid16}, 4, v0
    s_mov_b32 s16, s28
    s_mov_b32 s17, s29
    s_mov_b32 s18, {XB}
    s_mov_b32 s19, 0x20000
    s_waitcnt vmcnt(1)
    ''')
    e.stamp(12, 'A')
    e('s_barrier\n s_cmp_lg_u32 s20, 0\n s_cbranch_scc1 LAB_noarr')
    e.arrive(vBarA, '0xff')
    e('LAB_noarr:')
    e.vm = []
    e.stamp(8)
    loads = []
    for i in range(32):
        srcs = []
        for w in range(4):
            a, k = divmod(min(4 * i + w, 125), W_EARLY)
            srcs.append(('s32', 20480 * a + 1024 * (k - w)) if a < 6 else ('s33', 1024 * (k - w)))
        t = f's_add_u32 s3, {srcs[0][0]}, {srcs[0][1]}\n'
        if i == 31:
            t += f's_add_u32 s62, s52, {4096 * i}\n s_cmp_ge_u32 s20, 2\n s_cselect_b32 s3, {OOB}, s3\n s_cselect_b32 m0, 163840, s62\n'
        else:
            if len(set(srcs)) > 1:
                cut = [w for w in range(1, 4) if srcs[w] != srcs[w - 1]][0]
                t += f's_add_u32 s62, {srcs[cut][0]}, {srcs[cut][1]}\n s_cmp_ge_u32 s20, {cut}\n s_cselect_b32 s3, s62, s3\n'
            t += f's_add_u32 m0, s52, {4096 * i}\n'
        loads.append((t + f'buffer_load_dwordx4 v{vTid16}, s[8:11], s3 offen {LD} lds', 'w1'))
    for i in range(4):
        t = ''
        if i == 0:
            t = 's_and_b32 s55, s52, 1024\n s_lshr_b32 s62, s20, 1\n s_mul_i32 s62, s62, 20480\n s_add_u32 s55, s55, s62\n s_add_u32 s55, s55, 18432\n'
        if i < 3:
            t += f's_add_u32 s3, s55, s32\n s_add_u32 s3, s3, {40960 * i}\n'
        else:
            t += f's_add_u32 s3, s55, s33\n s_cmp_ge_u32 s20, 2\n s_cselect_b32 s3, {OOB}, s3\n'
        loads.append((t + f'buffer_load_dwordx4 {vr(LW + 4 * i, 4)}, v{vL16}, s[8:11], s3 offen {LD}', 'w1'))
    return loads

def pre1_gate(e):
    l = e.lab('g1')
    keep = list(e.vm)
    e(f's_cmp_lg_u32 s20, 0\n s_cbranch_scc1 {l}')
    e.spin(vPk1, vPre1, 20, 7, slp=CFG['slpi'])
    e(f'{l}:\n s_barrier')
    e.vm = keep

def q_of_half(e, dst, half):
    e(f'''
    s_sub_u32 s3, 32, s60
    s_cmp_eq_u32 s60, 0
    s_cselect_b32 s3, 16, s3
    s_cmp_eq_u32 {half}, 0
    s_cselect_b32 {dst}, s60, s3
    ''')

def phase_b(e, w1l, w2l):
    aD, aM, a0, a4, vMk, vHo, vSo, vV1, vV0, vV4, vBar, vMk4 = range(16, 28)
    XR, AC, W, WM, W4, FB, tmp, H = 28, 44, 76, 92, 108, 124, 28, 124
    e(f'''
    s_and_b32 s36, s61, 1
    s_bfe_u32 s37, s61, 0x20001
    s_lshr_b32 s3, s61, 3
    s_mul_i32 s3, s3, 3
    s_add_u32 s37, s37, s3
    s_sub_u32 s3, 4, s37
    s_cmp_eq_u32 s36, 0
    s_cselect_b32 s38, s37, s3
    ''')
    q_of_half(e, 's39', 's36')
    e(f'''
    v_lshl_add_u32 v{vT0}, s20, 4, v{vI}
    v_lshl_add_u32 v{vT0}, v{vT0}, 5, s39
    v_mul_u32_u24 v{vT1}, 1280, v{vT0}
    v_lshl_add_u32 v{vT1}, v{vG}, 6, v{vT1}
    s_lshl_b32 s3, s38, 8
    ''')
    for r in range(4):
        e(f'buffer_load_dwordx4 {vr(XR + 4 * r, 4)}, v{vT1}, s[4:7], s3 offen offset:{16 * r}', tag='xr')
    e(f'''
    v_cvt_f32_u32 v{vT0}, v{vT0}
    v_mul_f32 v{vT0}, {flit(1 / 2048)}, v{vT0}
    v_and_b32 v{vT1}, 1, v{vG}
    v_lshlrev_b32 v{vMk}, 31, v{vT1}
    v_lshrrev_b32 v{vT2}, 16, v{vMk}
    v_or_b32 v{vMk}, v{vMk}, v{vT2}
    v_lshrrev_b32 v{vT2}, 5, v{vLane}
    v_lshlrev_b32 v{vSo}, 3, v{vI}
    v_lshl_add_u32 v{vSo}, v{vT2}, 2, v{vSo}
    v_lshlrev_b32 v{vT2}, 3, v{vT2}
    v_cvt_f32_u32 v{FB}, v{vT2}
    v_bfe_u32 v{vT3}, v{vLane}, 2, 2
    v_add_u32 v{vT2}, v{vT2}, v{vT3}
    v_lshlrev_b32 v{a0}, 5, v{vT1}
    v_add_u32 v{a0}, {R_BASE}, v{a0}
    v_lshl_add_u32 v{aD}, v{vT2}, 7, v{a0}
    v_lshl_add_u32 v{a0}, v{vT2}, 6, v{a0}
    v_lshrrev_b32 v{vT3}, 1, v{vT3}
    v_xor_b32 v{vT2}, 1, v{vT3}
    v_lshl_add_u32 v{aM}, v{vT2}, 6, v{aD}
    v_lshl_add_u32 v{aD}, v{vT3}, 6, v{aD}
    v_and_b32 v{vT2}, 3, v{vLane}
    v_xor_b32 v{vT3}, 3, v{vT2}
    v_lshl_add_u32 v{aD}, v{vT2}, 3, v{aD}
    v_lshl_add_u32 v{aM}, v{vT3}, 3, v{aM}
    v_lshl_add_u32 v{a4}, v{vT3}, 3, v{a0}
    v_lshl_add_u32 v{a0}, v{vT2}, 3, v{a0}
    v_cvt_f32_u32 v{vT1}, v{vT1}
    v_sub_f32 v{vT1}, 1.0, v{vT1}
    v_mul_f32 v{vT1}, {flit(0.25)}, v{vT1}
    v_fma_f32 v{vT1}, v{vT0}, v{FB}, v{vT1}
    s_cmp_le_u32 s38, 2
    s_cselect_b32 s3, 0, -1
    s_cselect_b64 s[40:41], -1, 0
    v_and_b32 v{vMk4}, s3, v{vMk}
    v_cndmask_b32 v{a4}, v{a4}, v{a0}, s[40:41]
    ''')
    pre1_gate(e)
    mx = Mix(e, w1l, 4)
    for ks in range(4):
        for n in range(8):
            mx(f'v_fmamk_f32 v{FB + n}, v{vT0}, {flit(16 * ks + n)}, v{vT1}')
        for n in range(8):
            mx(f'v_sin_f32 v{FB + n}, v{FB + n}')
        for k in range(4):
            mx(f'v_cvt_pk_bf16_f32 v{W + 4 * ks + k}, v{FB + 2 * k}, v{FB + 2 * k + 1}')
    for k in range(16):
        mx(f'v_xor_b32 v{WM + k}, v{vMk}, v{W + k}\n v_xor_b32 v{W4 + k}, v{vMk4}, v{W + k}')
    e.wait(vm='xr')
    for r in range(4):
        for k in range(8):
            d = AC + 4 * k + (r if k <= 4 else 3 - r)
            x = XR + 4 * r + k // 2
            mx(f'v_lshlrev_b32 v{d}, 16, v{x}' if k % 2 == 0 else f'v_and_b32 v{d}, 0xffff0000, v{x}')
    e(f'''
    s_lshl_b32 s40, s37, 13
    s_lshl_b32 s3, s36, 6
    s_add_u32 s40, s40, s3
    s_xor_b32 s41, s40, 64
    s_sub_u32 s42, 4, s37
    s_lshl_b32 s42, s42, 13
    s_add_u32 s42, s42, s3
    s_xor_b32 s43, s3, 64
    s_cmp_eq_u32 s60, 0
    s_cselect_b32 s41, s42, s41
    s_cselect_b32 s42, s3, s43
    s_sub_u32 s43, 4, s38
    s_cmp_le_u32 s38, 2
    s_cselect_b32 s42, s3, s42
    s_cselect_b32 s43, s38, s43
    s_lshl_b32 s43, s43, 13
    s_add_u32 s42, s42, s43
    v_lshrrev_b32 v{vT0}, 3, v0
    v_and_b32 v{vT1}, 3, v0
    v_lshlrev_b32 v{vT1}, 4, v{vT1}
    v_lshl_add_u32 v{vV1}, v{vT0}, 7, v{vT1}
    v_lshrrev_b32 v{vT2}, 2, v0
    v_lshl_add_u32 v{vV0}, v{vT2}, 7, v{vT1}
    v_lshrrev_b32 v{vT0}, 1, v{vT0}
    v_xor_b32 v{vT0}, v{vT0}, v{vT2}
    v_and_b32 v{vT0}, 1, v{vT0}
    v_cmp_eq_u32 vcc, 0, v{vT0}
    v_mov_b32 v{vT1}, s41
    v_mov_b32 v{vT2}, s40
    v_cndmask_b32 v{vT1}, v{vT1}, v{vT2}, vcc
    v_add_u32 v{vV1}, v{vV1}, v{vT1}
    v_add_u32 v{vV4}, s42, v{vV0}
    v_add_u32 v{vV0}, s40, v{vV0}
    s_mul_i32 s40, s60, 204800
    s_add_u32 s40, s40, {VB}
    s_add_u32 s41, s52, {R_BASE}
    s_lshl_b32 s3, s36, 2
    s_lshl_b32 s42, s60, 3
    s_add_u32 s42, s42, s3
    s_add_u32 s42, s42, s20
    s_lshr_b32 s45, s42, 1
    s_add_u32 s45, s45, {C_BC}
    s_lshl_b32 s45, s45, 8
    s_mul_i32 s43, s42, 5
    s_add_u32 s43, s43, s38
    s_lshl_b32 s43, s43, 7
    s_add_u32 s43, s43, {SB}
    s_mul_i32 s42, s42, 20480
    s_lshl_b32 s3, s38, 12
    s_add_u32 s42, s42, s3
    s_add_u32 s42, s42, {HB}
    v_lshlrev_b32 v{vHo}, 4, v{vI}
    v_lshl_add_u32 v{vHo}, v{vG}, 10, v{vHo}
    s_and_b32 s3, s2, 7
    s_lshl_b32 s3, s3, 4
    v_add_u32 v{vBar}, s3, v{vLane}
    v_lshlrev_b32 v{vBar}, 8, v{vBar}
    ''')
    def swap4():
        l = e.lab('sw')
        e(f's_cmp_le_u32 s38, 2\n s_cbranch_scc1 {l}')
        e(f'v_swap_b32 v{AC + 16}, v{AC + 19}\n v_swap_b32 v{AC + 17}, v{AC + 18}\n {l}:')
    swap4()
    e.take(w1l, max(0, len(w1l) - (36 - CFG['p1'])))
    e.peek(vPk2, vPre2, 'pk2')
    e.stamp(9)
    e('s_cmp_lg_u32 s20, 0\n s_cbranch_scc1 LB_nopoll')
    keep = list(e.vm)
    e.spin(vT0, vBar, 16, '0xffff')
    e('LB_nopoll:\n s_barrier')
    e.vm = keep
    e.stamp(10)
    for va, src, dst in [(vV0, 0, 24576), (vV1, 40960, 0), (vV1, 45056, 4096), (vV1, 81920, 8192), (vV1, 86016, 12288),
                         (vV1, 122880, 16384), (vV1, 126976, 20480), (vV4, 163840, 28672)]:
        e(f's_add_u32 s3, s40, {src}\n s_add_u32 m0, s41, {dst}')
        e(f'buffer_load_dwordx4 v{va}, s[8:11], s3 offen {LD} lds', tag='V')
    e.confirm(vPk2, vPre2, 's47', 'pk2')
    pend = w1l + w2l
    e.take(pend, CFG['q1'])
    e.wait(vm='V')
    e('s_barrier')
    e.stamp(11)
    seq = [(b, ks) for b in (0, 1, 7, 2, 6, 3, 5, 4) for ks in range(4)]
    NB = 7
    def rd(n):
        b, ks = seq[n]
        f = FB + 4 * (n % 8)
        for u in range(2):
            if b in (0, 4):
                e(f'ds_read_b64_tr_b16 {vr(f + 2 * u, 2)}, v{a0 if b == 0 else a4} offset:{(24576 if b == 0 else 28672) + 1024 * ks + 256 * u}', tag=f'f{n}')
            else:
                c = b if b < 4 else 8 - b
                e(f'ds_read_b64_tr_b16 {vr(f + 2 * u, 2)}, v{aD if b < 4 else aM} offset:{8192 * (c - 1) + 2048 * ks + 512 * u}', tag=f'f{n}')
    for n in range(NB):
        rd(n)
    for n, (b, ks) in enumerate(seq):
        e.wait(lg=f'f{n}')
        w = W if b < 4 else (W4 if b == 4 else WM)
        e(f'{MF} {vr(AC + 4 * b, 4)}, {vr(FB + 4 * (n % 8), 4)}, {vr(w + 4 * ks, 4)}, {vr(AC + 4 * b, 4)}')
        if n + NB < len(seq):
            rd(n + NB)
        if n % 3 == 1 and n // 3 < CFG['q2']:
            e.take(pend, 1)
    e.fence()
    swap4()
    for r in range(4):
        for k in range(4):
            lo = AC + 8 * k + (r if 2 * k <= 4 else 3 - r)
            hi = AC + 8 * k + 4 + (r if 2 * k + 1 <= 4 else 3 - r)
            e(f'v_cvt_pk_bf16_f32 v{H + 4 * r + k}, v{lo}, v{hi}')
        e(f'buffer_store_dwordx4 {vr(H + 4 * r, 4)}, v{vHo}, s[8:11], s42 offen offset:{256 * r} {ST}', tag='hst')
    e(f'v_mov_b32 v{tmp}, 0\n v_mov_b32 v{tmp + 1}, 0\n v_mov_b32 v{tmp + 2}, 0\n v_mov_b32 v{tmp + 3}, 0')
    for k in range(16):
        s, q = tmp + 2 * (k % 2), tmp + 2 * (k % 2) + 1
        e(f'v_dot2_f32_bf16 v{s}, v{H + k}, s51, v{s}\n v_dot2_f32_bf16 v{q}, v{H + k}, v{H + k}, v{q}')
    e(f'''
    v_add_f32 v{tmp}, v{tmp}, v{tmp + 2}
    v_add_f32 v{tmp + 1}, v{tmp + 1}, v{tmp + 3}
    v_permlane32_swap_b32 v{tmp}, v{tmp + 1}
    v_add_f32 v{tmp}, v{tmp}, v{tmp + 1}
    v_mov_b32 v{tmp + 1}, v{tmp}
    v_permlane16_swap_b32 v{tmp}, v{tmp + 1}
    v_add_f32 v{tmp}, v{tmp}, v{tmp + 1}
    v_mov_b32 v{vT0}, s45
    ''')
    e(f'buffer_store_dword v{tmp}, v{vSo}, s[8:11], s43 offen {ST}', tag='hst')
    e.stamp(12)
    e.take(pend, CFG['q3'])
    e.wait(vm='hst')
    e.arrive(vT0, 1)
    assert not any(t == 'w1' for _, t in pend)
    e.wait(vm='w1')
    return pend

def sum_stats(src, mean, rstd=None):
    t = f'''
    v_add_f32 v{src}, v{src}, v{src + 2}
    v_add_f32 v{src + 4}, v{src + 4}, v{src + 6}
    v_add_f32 v{src}, v{src}, v{src + 8}
    v_add_f32 v{src}, v{src}, v{src + 4}
    v_mul_f32 v{mean}, {flit(1 / 640)}, v{src}
    '''
    if rstd is not None:
        t += f'''
        v_add_f32 v{src + 1}, v{src + 1}, v{src + 3}
        v_add_f32 v{src + 5}, v{src + 5}, v{src + 7}
        v_add_f32 v{src + 1}, v{src + 1}, v{src + 9}
        v_add_f32 v{src + 1}, v{src + 1}, v{src + 5}
        v_mul_f32 v{rstd}, {flit(1 / 640)}, v{src + 1}
        v_fma_f32 v{rstd}, -v{mean}, v{mean}, v{rstd}
        v_max_f32 v{rstd}, 0, v{rstd}
        v_add_f32 v{rstd}, {flit(1e-5)}, v{rstd}
        v_rsq_f32 v{rstd}, v{rstd}
        '''
    else:
        t += f'v_cvt_pk_bf16_f32 v{src}, v{mean}, v{mean}\n v_lshlrev_b32 v{mean}, 16, v{src}'
    return [(l.strip(), None) for l in t.split('\n') if l.strip()]

def stat_loads(dst, vtl8, soff, tag):
    return [(f'buffer_load_dwordx2 {vr(dst + 2 * r, 2)}, v{vtl8}, s[8:11], {soff} offen offset:{128 * r} {LD}', tag) for r in range(5)]

CS = 16
def colsums(e, pend):
    ONES, AC, FB, vC, vCl = 44, 48, 52, 10, 11
    e(f's_barrier\n s_add_u32 s3, s52, {R_BASE}\n v_add_u32 v{vC}, s3, v{vL16}')
    for i in range(4):
        if i == 3:
            e('s_cmp_ge_u32 s20, 2\n s_cbranch_scc1 LC_nolate')
        e(f'ds_write_b128 v{vC}, {vr(LW + 4 * i, 4)} offset:{4096 * i}')
    e('LC_nolate:')
    for k in range(4):
        e(f'v_mov_b32 v{ONES + k}, s51')
    e(f'''
    s_mul_i32 s3, s20, {W_SLOT}
    v_add_u32 v{vC}, s3, v{vL16}
    s_lshl_b32 s3, s20, 11
    s_add_u32 s3, s3, {R_BASE}
    v_add_u32 v{vCl}, s3, v{vL16}
    s_waitcnt lgkmcnt(0)
    s_barrier
    ''')
    for it in range(2):
        if it == 1:
            e(f's_cmp_eq_u32 s20, 3\n s_cbranch_scc1 LC_cs_done\n v_add_u32 v{vC}, {4 * W_SLOT}, v{vC}\n v_add_u32 v{vCl}, 8192, v{vCl}')
        for k in range(20):
            e(f'ds_read_b128 {vr(FB + 4 * k, 4)}, v{vC if k < 18 else vCl} offset:{1024 * (k if k < 18 else k - 18)}', tag=f'c{k}')
        for k in range(20):
            e.wait(lg=f'c{k}')
            e(f'{MF} {vr(AC, 4)}, {vr(FB + 4 * k, 4)}, {vr(ONES, 4)}, {vr(AC, 4) if k else 0}')
            if it == 0 and k % 2 == 0 and k // 2 < CFG['q4']:
                e.take(pend, 1)
        e(f's_add_u32 s3, s52, {R_CS + 4096 * it}\n v_add_u32 v{vT0}, s3, v{vL16}')
        e(f'ds_write_b128 v{vT0}, {vr(AC, 4)}')
    e('LC_cs_done:\n s_waitcnt lgkmcnt(0)\n s_barrier')
    e(f'v_add_u32 v{vT0}, {R_CS}, v{vL16}')
    for a in range(7):
        e(f'ds_read_b128 {vr(CS + 4 * a, 4)}, v{vT0} offset:{1024 * a}', tag='cs')

def phase_c(e, pend):
    vL1, vL2, vTl8, vM0, vM1, vSt = 10, 11, 12, 13, 14, 15
    AC, FB, ST0, PK = 44, 100, 132, 152
    NF = 8
    e(f'''
    v_add_u32 v{vL1}, 61440, v{vL16}
    v_add_u32 v{vL2}, 122880, v{vL16}
    v_lshlrev_b32 v{vTl8}, 3, v{vI}
    s_lshl_b32 s35, s60, 3
    s_lshl_b32 s3, s20, 1
    s_add_u32 s35, s35, s3
    s_mul_i32 s36, s35, 640
    s_add_u32 s36, s36, {SB}
    s_add_u32 s48, s36, 640
    s_mul_i32 s37, s35, 20480
    s_add_u32 s37, s37, {HB}
    s_add_u32 s38, s37, 20480
    s_lshr_b32 s3, s35, 1
    s_add_u32 s3, s3, {C_BC}
    s_lshl_b32 s3, s3, 8
    v_mov_b32 v{vT0}, s3
    s_lshr_b32 s39, s61, 2
    s_and_b32 s44, s61, 3
    s_lshl_b32 s40, s44, 1
    s_add_u32 s42, s44, 8
    s_lshr_b32 s43, s44, 1
    s_add_u32 s43, s43, 12
    s_cmp_lt_u32 s39, 3
    s_cselect_b32 s50, 0, {OOB}
    s_and_b32 s49, s35, 0xfc
    s_add_u32 s49, s49, s39
    s_lshl_b32 s49, s49, 1
    s_add_u32 s49, s49, {C_CD}
    s_lshl_b32 s49, s49, 8
    s_mul_i32 s39, s39, 14
    s_mul_i32 s3, s35, 56
    s_add_u32 s39, s39, s3
    s_add_u32 s40, s40, s39
    s_add_u32 s42, s42, s39
    s_add_u32 s43, s43, s39
    s_lshl_b32 s40, s40, 10
    s_lshl_b32 s42, s42, 10
    s_lshl_b32 s43, s43, 10
    s_add_u32 s40, s40, {H1B}
    s_add_u32 s41, s40, 1024
    s_add_u32 s42, s42, {H1B}
    s_add_u32 s43, s43, {H1B}
    s_lshl_b32 s3, s31, 3
    s_add_u32 s43, s43, s3
    v_or_b32 v{vSt}, s50, v{vL16}
    ''')
    def lds(slot, k):
        o = W_SLOT * slot + 1024 * k if k < W_EARLY else R_BASE + 2048 * slot + 1024 * (k - W_EARLY)
        return (vL16, o) if o < 61440 else ((vL1, o - 61440) if o < 122880 else (vL2, o - 122880))
    acc = lambda a, rt: AC + 8 * a + 4 * rt
    def rd(seq, n):
        k, a = seq[n]
        v, o = lds(a, k)
        e(f'ds_read_b128 {vr(FB + 4 * (n % NF), 4)}, v{v} offset:{o}', tag=f'w{n}')
    seq1 = [(k, a) for k in range(20) for a in (0, 1, 2, 3)]
    seq2 = [(k, a) for k in range(20) for a in (4, 5, 6)]
    for n in range(NF - 1):
        rd(seq1, n)
    e.stamp(13)
    e.spin(vT1, vT0, 10, 1)
    e.stamp(14)
    hl = []
    for k in range(20):
        for rt in range(2):
            t = f'buffer_load_dwordx4 {vr(8 * k + 4 * rt, 4, "a")}, v{vL16}, s[8:11], s{37 + rt} offen offset:{1024 * (k % 4)} {LD}'
            if k % 4 == 3:
                t += f'\n s_add_u32 s{37 + rt}, s{37 + rt}, 4096'
            hl.append((t, f'h{k}'))
    hl += stat_loads(ST0, vTl8, 's36', 'st') + stat_loads(ST0 + 10, vTl8, 's48', 'st')
    e.take(hl, 11)
    def epi(slots, rt, so, tag):
        out = []
        m = vM1 if rt else vM0
        p = PK + 4 * rt
        for n, a in enumerate(slots):
            for r in range(4):
                out.append((f'v_fma_f32 v{acc(a, rt) + r}, -v{m}, v{CS + 4 * a + r}, v{acc(a, rt) + r}', None))
            for k in range(2):
                out.append((f'v_cvt_pk_bf16_f32 v{p + 2 * n + k}, v{acc(a, rt) + 2 * k}, v{acc(a, rt) + 2 * k + 1}', None))
                out.append((f'v_pk_max_i16 v{p + 2 * n + k}, v{p + 2 * n + k}, 0', None))
        t = f's_add_u32 {so}, {so}, {56 * 1024}\n' if rt else ''
        out.append((t + (f'buffer_store_dwordx4 {vr(p, 4)}, v{vL16}, s[8:11], {so} offen {ST}' if len(slots) == 2 else
                         f'buffer_store_dwordx2 {vr(p, 2)}, v{vSt}, s[8:11], {so} offen {ST}'), tag))
        return out
    def gemm(seq, nxt, hook):
        for n, (k, a) in enumerate(seq):
            e.wait(vm=f'h{k}', lg=f'w{n}')
            for rt in range(2):
                d = vr(acc(a, rt), 4)
                e(f'{MF} {d}, {vr(FB + 4 * (n % NF), 4)}, {vr(8 * k + 4 * rt, 4, "a")}, {d if k else 0}')
                if rt == 0:
                    if n + NF - 1 < len(seq):
                        rd(seq, n + NF - 1)
                    elif nxt:
                        rd(nxt, n + NF - 1 - len(seq))
                hook(n, k, rt)
    def hook1(n, k, rt):
        if rt == 1 and n % 2 == 1:
            e.take(hl, 1)
    gemm(seq1, seq2, hook1)
    e.take(hl)
    e.stamp(15)
    fill = [('WAITST', None)] + sum_stats(ST0, vM0) + sum_stats(ST0 + 10, vM1)
    for (slots, so) in (((0, 1), 's40'), ((2, 3), 's41')):
        for rt in range(2):
            fill += epi(slots, rt, so, 'u1')
    free_after = {8: 8, 9: 10, 10: 13, 11: 15, 12: 18, 13: 99}
    def hook2(n, k, rt):
        if fill:
            if fill[0][0] == 'WAITST':
                fill.pop(0); e.wait(vm='st', lg='cs')
            e.take(fill, 2 if rt else 1)
        elif rt == 1 and pend and n % CFG['c2'] == 0:
            step = int(pend[0][1][3:])
            if k > free_after.get(step, -1):
                e.take(pend, 1)
        if n == 51 and rt == 1:
            e.wait(vm='u1')
            e(f'v_mov_b32 v{vT0}, s49')
            e.arrive(vT0, 1)
    gemm(seq2, None, hook2)
    for so, slots in (('s42', (4, 5)), ('s43', (6,))):
        for rt in range(2):
            e.take(epi(slots, rt, so, 'u2'))
    e.stamp(16)

def phase_d(e, pend):
    vTl8, vM, vR, vHo, vOo, vOo2, vW, vRd, vC1, vPk = 10, 11, 12, 13, 14, 15, 104, 105, 106, 107
    AC, ST0, HR, tmp = 16, 108, 120, 140
    e(f'''
    s_lshr_b32 s30, s61, 3
    s_and_b32 s31, s61, 7
    s_lshl_b32 s33, s60, 3
    s_lshl_b32 s34, s30, 2
    s_add_u32 s33, s33, s34
    s_mul_i32 s34, s33, 56
    s_add_u32 s33, s33, s20
    s_lshl_b32 s3, s33, 1
    s_add_u32 s3, s3, {C_CD}
    s_lshl_b32 s3, s3, 8
    v_mov_b32 v{vC1}, s3
    s_mul_i32 s3, s20, 14
    s_add_u32 s34, s34, s3
    s_lshl_b32 s34, s34, 10
    s_add_u32 s34, s34, {H1B}
    s_add_u32 s35, s34, {56 * 1024}
    s_add_u32 s36, s34, {2 * 56 * 1024}
    s_add_u32 s37, s34, {3 * 56 * 1024}
    v_lshlrev_b32 v{vHo}, 4, v{vI}
    v_lshl_add_u32 v{vM}, v{vG}, 8, v{vHo}
    v_lshrrev_b32 v{vR}, 5, v{vLane}
    v_lshl_add_u32 v{vHo}, v{vR}, 8, v{vHo}
    v_and_b32 v{vR}, 1, v{vG}
    v_lshl_add_u32 v{vHo}, v{vR}, 3, v{vHo}
    v_lshlrev_b32 v{vTl8}, 3, v{vI}
    s_mul_i32 s38, s33, 640
    s_add_u32 s38, s38, {SB}
    s_mul_i32 s40, s33, 20480
    s_mul_i32 s3, s31, 2560
    s_add_u32 s40, s40, s3
    s_add_u32 s40, s40, {HB}
    s_add_u32 s49, s49, 256
    v_mov_b32 v{vT0}, s49
    ''')
    misc = stat_loads(ST0, vTl8, 's38', 'st') + [
        (f'buffer_load_dwordx4 {vr(HR, 4)}, v{vM}, s[8:11], s40 offen {LD}', 'st'),
        (f'buffer_load_dwordx4 {vr(HR + 4, 4)}, v{vM}, s[8:11], s40 offen offset:1024 {LD}', 'st'),
        (f'buffer_load_dwordx2 {vr(HR + 8, 2)}, v{vHo}, s[8:11], s40 offen offset:2048 {LD}', 'st')]
    e.peek(vPk, vC1, 'pk')
    e.wait(vm='u2')
    e.arrive(vT0, 1)
    e.confirm(vPk, vC1, 8, 'pk')
    e.stamp(17)
    def ldh(n):
        out = []
        for rt in range(4):
            t = f'buffer_load_dwordx4 {ringreg(n, rt)}, v{vL16}, s[8:11], s{34 + rt} offen offset:{1024 * (n % 4)} {LD}'
            if n % 4 == 3:
                t += f'\n s_add_u32 s{34 + rt}, s{34 + rt}, 4096'
            out.append((t, f'r{n}'))
        return out
    for n in range(3):
        e.take(ldh(n))
    q_of_half(e, 's39', 's30')
    e(f'''
    v_lshl_add_u32 v{vOo}, s20, 4, v{vI}
    v_lshl_add_u32 v{vOo}, v{vOo}, 5, s39
    v_mul_u32_u24 v{vOo}, 1280, v{vOo}
    v_lshl_add_u32 v{vOo2}, v{vG}, 3, v{vOo}
    v_lshl_add_u32 v{vOo}, v{vG}, 4, v{vOo}
    s_mul_i32 s39, s31, 160
    s_mul_i32 s3, s20, 20480
    v_add_u32 v{vW}, s3, v{vL16}
    s_mul_i32 s3, s20, 5120
    v_add_u32 v{vRd}, s3, v{vL16}
    v_add_u32 v{vC1}, 256, v{vC1}
    ''')
    extra = pend + misc
    per = -(-len(extra) // 9)
    for n in range(14):
        if n == 12:
            e('s_cmp_eq_u32 s20, 3\n s_cbranch_scc1 LD_kdone')
        if n == 4:
            e.peek(vPk, vC1, 'pk')
        if n == 5:
            e.confirm(vPk, vC1, 8, 'pk')
        fill = (ldh(n + 3) if n + 3 < 14 else []) + [extra.pop(0) for _ in range(min(per, len(extra)))]
        assert not any(t == f'w2_{n}' for _, t in fill + extra)
        e.wait(vm=(f'w2_{n}', f'r{n}'))
        for rt in range(4):
            for a in range(5):
                d = vr(AC + 20 * rt + 4 * a, 4)
                e(f'{MF} {d}, {w2reg(n, a)}, {ringreg(n, rt)}, {d if n else 0}')
                if (5 * rt + a) % 2 == 0:
                    e.take(fill, 1)
        assert not fill
    e('LD_kdone:\n s_waitcnt vmcnt(0)')
    e.stamp(9, 'D')
    e.take(sum_stats(ST0, vM, vR))
    e('s_barrier')
    for rt in range(4):
        for a in range(5):
            e(f'ds_write_b128 v{vW}, {vr(AC + 20 * rt + 4 * a, 4)} offset:{5120 * rt + 1024 * a}')
    e(f'v_add_u32 v{vT0}, 61440, v{vRd}\n s_waitcnt lgkmcnt(0)\n s_barrier')
    e.stamp(10, 'D')
    for s in range(4):
        for a in range(5):
            e(f'ds_read_b128 {vr(AC + 20 * s + 4 * a, 4)}, v{vRd} offset:{20480 * s + 1024 * a}' if s < 3 else
              f'ds_read_b128 {vr(AC + 20 * s + 4 * a, 4)}, v{vT0} offset:{1024 * a}', tag=f'q{s}')
    e.wait(lg='q1')
    for k in range(0, 20, 2):
        e(f'v_pk_add_f32 {vr(AC + k, 2)}, {vr(AC + k, 2)}, {vr(AC + 20 + k, 2)}')
    e.wait(lg='q3')
    for k in range(0, 20, 2):
        e(f'v_pk_add_f32 {vr(AC + 40 + k, 2)}, {vr(AC + 40 + k, 2)}, {vr(AC + 60 + k, 2)}')
    for k in range(0, 20, 2):
        e(f'v_pk_add_f32 {vr(AC + k, 2)}, {vr(AC + k, 2)}, {vr(AC + 40 + k, 2)}')
    for k in range(10):
        h = HR + k
        e(f'v_lshlrev_b32 v{tmp}, 16, v{h}\n v_and_b32 v{tmp + 1}, 0xffff0000, v{h}')
        e(f'v_pk_fma_f32 {vr(tmp, 2)}, {vr(AC + 2 * k, 2)}, {vr(vR, 2)}, {vr(tmp, 2)} op_sel_hi:[1,0,1]')
        e(f'v_cvt_pk_bf16_f32 v{h}, v{tmp}, v{tmp + 1}')
        if k == 3:
            e(f'buffer_store_dwordx4 {vr(HR, 4)}, v{vOo}, s[16:19], s39 offen')
        if k == 7:
            e(f'buffer_store_dwordx4 {vr(HR + 4, 4)}, v{vOo}, s[16:19], s39 offen offset:64')
    e(f'buffer_store_dwordx2 {vr(HR + 8, 2)}, v{vOo2}, s[16:19], s39 offen offset:128')
    e.stamp(11, 'D')

def dump_stamps(e, nst):
    if not CFG['stamps']:
        return
    e(f'''
    s_waitcnt vmcnt(0)
    {CFG["clk"]} s[0:1]
    s_lshl_b32 s3, s2, 2
    s_add_u32 s3, s3, s20
    s_lshl_b32 s3, s3, 7
    s_add_u32 s3, s3, {TSB}
    s_waitcnt lgkmcnt(0)
    s_mov_b64 exec, 1
    v_mov_b32 v0, 0
    ''')
    for n in range(nst):
        e(f'v_mov_b32 v1, s{64 + 2 * n}\n buffer_store_dword v1, v0, s[8:11], s3 offen offset:{4 * n}')
    e(f'v_mov_b32 v1, s0\n buffer_store_dword v1, v0, s[8:11], s3 offen offset:{4 * nst}')

def build():
    e = K()
    phase_a(e)
    w1l = after_a(e)
    early = [l for n in range(8) for l in w2_loads(n)]
    late = [l for n in range(8, 14) for l in w2_loads(n)]
    e('s_cmp_ge_u32 s61, 8\n s_cselect_b32 s62, 4, 6\n s_cmp_ge_u32 s44, s62\n s_cbranch_scc1 LB_idle')
    pend = phase_b(e, list(w1l), list(early))
    done = len(early) - len(pend)
    e('s_branch LB_join\n LB_idle:')
    e.vm, e.lg = [], []
    for n in (9, 10, 11, 12):
        e.stamp(n)
    pre1_gate(e)
    e.take(list(w1l))
    e.peek(vPk2, vPre2, 'pk2')
    e.confirm(vPk2, vPre2, 's47', 'pk2', slp=CFG['slpi'])
    e.take(early[:done])
    e('LB_join:')
    e.vm = []
    colsums(e, pend)
    pend += late
    phase_c(e, pend)
    phase_d(e, pend)
    dump_stamps(e, 18)
    e('L_done:\n s_endpgm')
    print('instructions', len(e.ins), 'nops', e.nops, file=sys.stderr)
    name = NAME + '_kernel'
    hdr = open('cdna_kernels/' + NAME + '.s.ref').read().split('; Override launch')[0]
    return (hdr + '; @launch grid=(256,1,1) block=(256,1,1) lds=163840\n.amdgcn_target "amdgcn-amd-amdhsa--gfx950"\n.text\n'
            f'.globl {name}\n.p2align 8\n.type {name},@function\n{name}:\n' + e.text() +
            '\n.section .rodata,"a"\n.p2align 6\n' + kd(name, 512, 102, 256))

if __name__ == '__main__':
    for a in sys.argv[2:]:
        k, _, v = a.partition('=')
        assert k in CFG, k
        CFG[k] = (int(v) if v.lstrip('-').isdigit() else v) if v else True
    open(sys.argv[1], 'w').write(build())
```

```python
import re, struct

def f2u(x):
    return struct.unpack('<I', struct.pack('<f', x))[0]

def flit(x):
    return hex(f2u(x))

_REG = re.compile(r'^(-|abs\()?([vas])(?:\[(\d+):(\d+)\]|(\d+))\)?$')

def regs_of(op):
    op = op.strip()
    if op in ('vcc', 'exec', 'm0', 'scc'):
        return [op]
    if op in ('vcc_lo', 'vcc_hi'):
        return ['vcc']
    if op in ('exec_lo', 'exec_hi'):
        return ['exec']
    m = _REG.match(op)
    if not m:
        return []
    k = m.group(2)
    if m.group(3) is not None:
        return [f'{k}{i}' for i in range(int(m.group(3)), int(m.group(4)) + 1)]
    return [f'{k}{m.group(5)}']

TRANS = ('v_exp_', 'v_log_', 'v_rcp_', 'v_rsq_', 'v_sqrt_', 'v_sin_', 'v_cos_')

class Ins:
    def __init__(self, text):
        self.text = text
        t = text.split(';')[0].strip()
        self.label = t.endswith(':')
        parts = t.split(None, 1)
        self.mn = parts[0] if parts else ''
        rest = parts[1] if len(parts) > 1 else ''
        rest = re.sub(r'\s\w+:\[[^\]]*\]', '', rest)
        ops = [o.strip() for o in rest.split(',')] if rest else []
        if ops:
            last = ops[-1].split()
            self.mods = last[1:]
            ops[-1] = last[0] if last else ''
        else:
            self.mods = []
        self.ops = ops
        mn = self.mn
        self.mfma = mn.startswith('v_mfma')
        self.valu = mn.startswith('v_') and not self.mfma
        self.trans = mn.startswith(TRANS)
        self.vmem = mn.startswith(('buffer_', 'global_'))
        self.ds = mn.startswith('ds_')
        self.smem = mn.startswith(('s_load', 's_memtime', 's_memrealtime'))
        self.dpp = '_dpp' in mn
        self.perm = mn.startswith('v_permlane')
        self.lds_dma = self.vmem and ('lds' in self.mods or '_lds_' in mn)
        R = lambda l: [r for o in l for r in regs_of(o)]
        w, r = [], []
        if self.label or not mn:
            pass
        elif self.vmem:
            if mn.startswith(('buffer_wbl2', 'buffer_inv')):
                pass
            elif self.lds_dma:
                r = R(ops) + ['m0']
            elif 'store' in mn or ('atomic' in mn and 'sc0' not in self.mods):
                r = R(ops)
            elif 'atomic' in mn:
                w, r = R(ops[:1]), R(ops)
            else:
                w, r = R(ops[:1]), R(ops[1:])
        elif self.ds:
            if 'write' in mn or mn.startswith('ds_add'):
                r = R(ops)
            else:
                w, r = R(ops[:1]), R(ops[1:])
        elif self.mfma:
            w, r = R(ops[:1]), R(ops[1:])
            self.srcc = set(R(ops[3:4])); self.srcab = set(R(ops[1:3]))
        elif self.valu:
            if self.perm or mn.startswith('v_swap'):
                w, r = R(ops), R(ops)
            else:
                w, r = R(ops[:1]), R(ops[1:])
                if mn.startswith(('v_fmac', 'v_dot2c', 'v_pk_fmac')) or self.dpp:
                    r += w
                if mn.startswith(('v_add_co', 'v_sub_co', 'v_addc_co')):
                    w = R(ops[:2]); r = R(ops[2:])
                if mn.startswith('v_cmpx'):
                    w += ['exec']
        elif mn.startswith('s_'):
            if mn.startswith(('s_cmp', 's_cbranch', 's_branch', 's_waitcnt', 's_nop', 's_barrier', 's_endpgm', 's_sleep', 's_setprio', 's_bitcmp')):
                r = R(ops)
            else:
                w, r = R(ops[:1]), R(ops[1:])
                if 'saveexec' in mn:
                    w += ['exec']
        self.w, self.r = set(w), set(r)
        self.states = 1
        if mn == 's_nop':
            self.states = int(ops[0], 0) + 1
        if self.label or not mn:
            self.states = 0
        self.wide_store = self.vmem and 'store' in mn and mn.endswith(('x3', 'x4'))

def need(p, c):
    n = 0
    isv = lambda s: {x for x in s if x[0] in 'va' and x != 'vcc'}
    iss = lambda s: {x for x in s if x[0] == 's' or x in ('vcc',)}
    if p.valu:
        pv = isv(p.w)
        if c.mfma and pv & c.r: n = max(n, 2)
        if c.perm and pv & c.r: n = max(n, 2)
        if c.dpp and pv & c.r: n = max(n, 2)
        if c.mn.startswith(('v_readfirstlane', 'v_readlane')) and pv & c.r: n = max(n, 1)
        if p.trans and c.valu and not c.trans and pv & c.r: n = max(n, 1)
        if p.trans and (c.vmem or c.ds) and pv & c.r: n = max(n, 1)
        ps = iss(p.w)
        if c.vmem and ps & c.r: n = max(n, 5)
        if c.valu and ps & c.r: n = max(n, 2)
        if c.mn.startswith(('v_readlane', 'v_writelane')) and ps & c.r: n = max(n, 4)
        if 'exec' in p.w:
            if c.mfma or c.perm or c.mn.startswith(('v_readfirstlane', 'v_readlane')): n = max(n, 4)
            if c.dpp: n = max(n, 5)
    if p.mn.startswith('v_dot'):
        if p.w & (c.r | c.w) and not (c.mn == p.mn and not (p.w & set(r for o in c.ops[1:3] for r in regs_of(o)))): n = max(n, 3)
    if p.mfma:
        big = '32x32' in p.mn
        if c.mfma:
            if p.w & c.srcab: n = max(n, 12 if big else 8)
            if p.w & c.srcc and not (p.w == c.srcc and (('32x32' in c.mn) == big)): n = max(n, 10 if big else 6)
            if p.w & c.w and not (p.w & c.srcc): n = max(n, 10 if big else 6)
        elif c.valu or c.vmem or c.ds:
            if p.w & (c.r | c.w): n = max(n, 12 if big else 8)
            if c.valu and p.srcc & c.w: n = max(n, 7 if big else 3)
    if p.wide_store or (p.ds and 'write' in p.mn):
        if c.valu and isv(p.r) & c.w and p.wide_store: n = max(n, 2)
    if p.mn.startswith('s_') and 'm0' in p.w and c.lds_dma: n = max(n, 1)
    return n

class Emit:
    def __init__(self):
        self.ins = []
        self.vm = []
        self.lg = []
        self.nops = 0
        self.total = 0
    def __call__(self, text, tag=None):
        for line in text.strip().split('\n'):
            line = line.strip()
            if not line or line.startswith(';'):
                continue
            i = Ins(line)
            if not i.label:
                req = self._required(i, len(self.ins) - 1, 0)
                if req > 0:
                    self.ins.append(Ins(f's_nop {req - 1}'))
                    self.nops += 1
            self.ins.append(i)
            if i.vmem:
                self.vm.append(tag); self.total += 1
            if i.ds: self.lg.append(tag)
            if i.mn == 's_waitcnt':
                m = re.search(r'vmcnt\((\d+)\)', line)
                if m: self.vm = self.vm[len(self.vm) - int(m.group(1)):] if int(m.group(1)) < len(self.vm) and int(m.group(1)) > 0 else ([] if int(m.group(1)) == 0 else self.vm)
                m = re.search(r'lgkmcnt\((\d+)\)', line)
                if m: self.lg = self.lg[len(self.lg) - int(m.group(1)):] if int(m.group(1)) < len(self.lg) and int(m.group(1)) > 0 else ([] if int(m.group(1)) == 0 else self.lg)
    def _required(self, i, k, gap):
        req = 0
        while k >= 0 and gap < 20:
            p = self.ins[k]
            if p.label:
                name = p.text.strip()[:-1]
                for b in range(k - 1, -1, -1):
                    q = self.ins[b]
                    if q.mn.startswith(('s_cbranch', 's_branch')) and q.ops and q.ops[0] == name:
                        req = max(req, self._required(i, b - 1, gap + 1))
                if k > 0 and self.ins[k - 1].mn in ('s_branch', 's_endpgm'):
                    return req
            else:
                req = max(req, need(p, i) - gap)
                gap += p.states
            k -= 1
        return req
    def _n(self, lst, tags, cap):
        idx = [k for k, t in enumerate(lst) if t in tags]
        if not idx:
            return None
        return min(len(lst) - 1 - idx[-1], cap)
    def wait(self, vm=(), lg=()):
        vm = (vm,) if isinstance(vm, str) else tuple(vm)
        lg = (lg,) if isinstance(lg, str) else tuple(lg)
        a, b = self._n(self.vm, vm, 63), self._n(self.lg, lg, 15)
        s = ''
        if a is not None: s += f' vmcnt({a})'
        if b is not None: s += f' lgkmcnt({b})'
        if s: self('s_waitcnt' + s)
    def fence(self):
        self('s_nop 7')
    def text(self):
        return '\n'.join(('' if i.label else '    ') + i.text for i in self.ins)

def vr(base, n=1, k='v'):
    return f'{k}{base}' if n == 1 else f'{k}[{base}:{base + n - 1}]'
```

```python
import numpy as np
S, D, F = 2048, 640, 1728

def bf16r(a):
    a = np.ascontiguousarray(a, dtype=np.float32)
    u = a.view(np.uint32).astype(np.uint64)
    r = ((u + 0x7fff + ((u >> 16) & 1)) >> 16) << 16
    return r.astype(np.uint32).view(np.float32).reshape(a.shape)

def to_u16(a):
    return (bf16r(a).view(np.uint32) >> 16).astype(np.uint16)

def from_u16(u):
    return (u.astype(np.uint32) << 16).view(np.float32)

def q_of(p, half):
    return (16 * half) if p == 0 else (32 - p if half else p)

def row_of(p, rt, tl):
    half, w = rt // 4, rt % 4
    return q_of(p, half) + 32 * (16 * w + tl)

def unit_start(j):
    return 7 * j if j <= 12 else 84 + 6 * (j - 12)

def phase_a(x):
    m = x.mean(1, dtype=np.float64); v = (x.astype(np.float64) ** 2).mean(1) - m * m
    r = 1.0 / np.sqrt(v + 1e-5)
    xx = x.reshape(32, 64, 8, 80)
    mm = m.reshape(32, 64); rr = r.reshape(32, 64)
    V = np.zeros((32, 5, 5, 64, 2, 16), np.float32)
    s2 = np.arange(32); th = 2 * np.pi * np.outer(s2, s2) / 32
    c32, s32 = bf16r(np.cos(th)).astype(np.float64), bf16r(np.sin(th)).astype(np.float64)
    d1 = np.arange(80)
    for kap in range(5):
        a8 = 2 * np.pi * np.arange(8) * kap / 8
        wr, wi = bf16r(np.cos(a8)).astype(np.float64), bf16r(-np.sin(a8)).astype(np.float64)
        Gr = np.einsum('abcd,c->abd', xx, wr); Gi = np.einsum('abcd,c->abd', xx, wi)
        if kap == 0:
            Gr = Gr - 8 * bf16r(mm).astype(np.float64)[:, :, None]
        Gr = bf16r(Gr * rr[:, :, None]).astype(np.float64); Gi = bf16r(Gi * rr[:, :, None]).astype(np.float64)
        if kap in (0, 4):
            Gi = Gi * 0
        Tr = bf16r(np.einsum('ta,abd->tbd', c32, Gr) + np.einsum('ta,abd->tbd', s32, Gi)).astype(np.float64)
        Ti = bf16r(np.einsum('ta,abd->tbd', c32, Gi) - np.einsum('ta,abd->tbd', s32, Gr)).astype(np.float64)
        e = kap + 8 * np.arange(80)
        ph = 2 * np.pi * (np.outer(e, d1) % 640) / 640
        C, Sn = bf16r(np.cos(ph)).astype(np.float64), bf16r(np.sin(ph)).astype(np.float64)
        Vr = np.einsum('ed,tbd->tbe', C, Tr) + np.einsum('ed,tbd->tbe', Sn, Ti)
        Vi = np.einsum('ed,tbd->tbe', C, Ti) - np.einsum('ed,tbd->tbe', Sn, Tr)
        V[:, :, kap, :, 0, :] = bf16r(Vr).reshape(32, 64, 5, 16).transpose(0, 2, 1, 3)
        V[:, :, kap, :, 1, :] = bf16r(Vi).reshape(32, 64, 5, 16).transpose(0, 2, 1, 3)
    return V

def vbuf_of(V):
    out = np.zeros((16, 5, 5, 64, 2, 2, 16), np.float32); mask = np.zeros(out.shape, bool)
    for p in range(16):
        for half in range(2):
            q = q_of(p, half)
            for cls in range(5):
                for rho in range(5 if cls < 4 else 3):
                    lam = rho if (cls == 4 or half == 0) else 4 - rho
                    out[p, cls, lam, :, half] = V[q, rho, cls]; mask[p, cls, lam, :, half] = True
    return out, mask

def phase_b(x, V):
    h = np.zeros((S, D), np.float32)
    s1 = np.arange(64)
    for q in range(32):
        qm = (32 - q) % 32
        t = q + 32 * np.arange(64)
        ps = 2 * np.pi * (np.outer(t, s1) % 2048) / 2048
        C, Sn = bf16r(np.cos(ps)).astype(np.float64), bf16r(np.sin(ps)).astype(np.float64)
        for rho in range(5):
            for kap in range(8):
                direct = kap < 4 or (kap == 4 and rho <= 2)
                if direct:
                    y = C @ V[q, rho, kap, :, 0, :] + Sn @ V[q, rho, kap, :, 1, :]
                else:
                    Vm = V[qm, 4 - rho, 8 - kap][:, :, ::-1]
                    y = C @ Vm[:, 0, :] - Sn @ Vm[:, 1, :]
                cols = kap + 8 * (16 * rho + np.arange(16))
                h[np.ix_(t, cols)] = bf16r(x[np.ix_(t, cols)] + y)
    return h

def hbuf_of(h):
    out = np.zeros((16, 8, 80, 16, 8), np.float32)
    for p in range(16):
        for rt in range(8):
            rows = [row_of(p, rt, tl) for tl in range(16)]
            out[p, rt] = h[rows].reshape(16, 80, 8).transpose(1, 0, 2)
    return out

def w1col(u, i):
    return 32 * (u // 2) + 8 * (i // 4) + 4 * (u % 2) + i % 4

def w1buf_of(w1):
    cols = np.array([[w1col(u, i) for i in range(16)] for u in range(108)])
    return w1[:, cols].reshape(20, 4, 8, 108, 16).transpose(3, 0, 1, 4, 2).copy()

IDX_LO = [0, 1, 10, 8, 2, 3, 11, 4, 5, 12, 9, 6, 7, 13]
IDX_HI = [0, 1, 10, 2, 3, 11, 4, 5, 12, 6, 7, 13]
def pos_of(k):
    w = min(k // 14, 3); rel = k - 14 * w
    return 14 * w + (IDX_LO if w < 3 else IDX_HI)[rel]
POS = np.array([pos_of(k) for k in range(54)])

def w2col(tile, i):
    if tile < 4:
        return 32 * (tile // 2) + 8 * (i // 4) + 4 * (tile % 2) + i % 4
    return 64 + i

def w2buf_of(w2):
    out = np.zeros((8, 56, 5, 4, 16, 8), np.float32)
    for tile in range(5):
        for i in range(16):
            n = w2col(tile, i)
            for G in range(4):
                ks = np.array([4 * G + r for r in range(4)] + [16 + 4 * G + r for r in range(4)])
                for c8 in range(8):
                    col = w2[:, 80 * c8 + n].reshape(54, 32)
                    out[c8, POS, tile, G, i, :] = col[:, ks]
    return out

def phase_c(h, w1):
    hd = h.astype(np.float64)
    m = hd.mean(1); v = (hd ** 2).mean(1) - m * m
    r = 1.0 / np.sqrt(v + 1e-5)
    u = hd @ w1.astype(np.float64) - np.outer(bf16r(m).astype(np.float64), w1.astype(np.float64).sum(0))
    return np.maximum(bf16r(u), 0), r

def h1buf_of(u):
    out = np.zeros((16, 8, 56, 4, 16, 8), np.float32)
    for p in range(16):
        for rt in range(8):
            rows = [row_of(p, rt, tl) for tl in range(16)]
            out[p, rt, POS] = u[rows].reshape(16, 54, 2, 4, 4).transpose(1, 3, 0, 2, 4).reshape(54, 4, 16, 8)
    return out

def phase_d(h, u, r, w2):
    return bf16r(h + r[:, None] * (u.astype(np.float64) @ w2.astype(np.float64)))

def reference_exact(x, w1, w2):
    xd = x.astype(np.float64)
    z = (xd - xd.mean(1, keepdims=True)) / np.sqrt(xd.var(1, keepdims=True) + 1e-5)
    y = np.fft.fft2(z).real
    h = xd + y
    z2 = (h - h.mean(1, keepdims=True)) / np.sqrt(h.var(1, keepdims=True) + 1e-5)
    return h, h + np.maximum(z2 @ w1, 0) @ w2

if __name__ == '__main__':
    rng = np.random.default_rng(0)
    x = bf16r(bf16r(rng.standard_normal((S, D))) * 0.05)
    w1 = bf16r(bf16r(rng.standard_normal((D, F))) * 0.4); w2 = bf16r(bf16r(rng.standard_normal((F, D))) * 0.4)
    V = phase_a(x); h = phase_b(x, V)
    u, r = phase_c(h, w1); out = phase_d(h, u, r, w2)
    he, oe = reference_exact(x, w1, w2)
    print('h err max', np.abs(h - he).max(), 'rms', np.sqrt(((h - he) ** 2).mean()), 'h rms', np.sqrt((he ** 2).mean()))
    print('out err max', np.abs(out - oe).max(), 'rms', np.sqrt(((out - oe) ** 2).mean()), 'max', np.abs(oe).max())
```

```python
import sys
sys.path.insert(0, 'tools')
from emit import *
from asmlib import *
from model import IDX_LO, IDX_HI

W1B, W2B, VB, HB, SB, H1B = 0x100000, 0x400000, 0x700000, 0xB00000, 0xE00000, 0x1000000
WS_BYTES = 0x1800000
XB = 2048 * 1280
MF = 'v_mfma_f32_16x16x32_bf16'
ST, LD = 'sc1', 'sc1'
C_BAR, C_PRE1, C_PRE2, C_BC, C_CD = 0, 128, 160, 192, 256
OOB = 0x80000000
TSB = 0x40000
SPIN = 100000

CFG = dict(stamps=False, clk='s_memrealtime', dbg='', xpol='', wpol='', cpf=1, slp=2, slpi=20,
           dbgwg=-1, padto=0, pfirst=0, cpfearly=1, bmix=6, cfill=2, w1pol='', rpol='', w1a=6, rot=0, tat=1, touch=1, ta=0, hoist=0, jmap=0, skipw2=0, skipw1=0, nosync=0, skiph1=0, skiph=0, lite=0, tpol='', w0=6, n0=5, xmix=14, pre0=2, pret=0, nopre=0, nov=0, vpol='sc1', ppol='sc1', dst='', p1=36, q1=3, q2=5, q3=8, q4=8, c2=2, u1at=36, w1left=8, q5=1, q6=6, bat=9, opol='sc1', split=4, d1=0, pk2at=20, h0=10, d0=10)

vLane, vG, vI, vL16, vOne, vT0, vT1, vT2, vT3 = 1, 2, 3, 4, 5, 6, 7, 8, 9

class K(Emit):
    nlab = 0
    def lab(self, s):
        K.nlab += 1
        return f'L{s}{K.nlab}'
    def stamp(self, n, grp=''):
        if CFG['stamps'] and (n == 0 or not CFG['lite']) and (grp == CFG['dbg'] or (grp == '' and not (CFG['dbg'] and 9 <= n <= 12 and CFG['dbg'] != 'B'))):
            self(f'{CFG["clk"]} s[{64 + 2 * n}:{65 + 2 * n}]')
    def spin(self, v, vaddr, target, mask, srd='s[8:11]', slp=None):
        l, d = self.lab('poll'), self.lab('polld')
        self(f's_mov_b64 exec, {mask}\n s_mov_b32 s63, {0 if CFG["nosync"] else SPIN}\n {l}:')
        self(f'buffer_load_dword v{v}, v{vaddr}, {srd}, 0 offen sc1')
        self(f's_sub_u32 s63, s63, 1\n s_cbranch_scc1 {d}\n s_waitcnt vmcnt(0)')
        self(f'v_cmp_ne_u32 vcc, {target}, v{v}\n s_cbranch_vccz {d}\n s_sleep {CFG["slp"] if slp is None else slp}\n s_branch {l}')
        self(f'{d}:\n s_waitcnt vmcnt(0)\n s_mov_b64 exec, -1')
    def peek(self, v, vaddr, tag, srd='s[8:11]'):
        self(f'buffer_load_dword v{v}, v{vaddr}, {srd}, 0 offen sc1', tag=tag)
    def confirm(self, v, vaddr, target, tag, srd='s[8:11]', slp=None, mask=1):
        l = self.lab('ok')
        self.wait(vm=tag)
        keep, tot = list(self.vm), self.total
        self(f'v_cmp_ne_u32 vcc, {target}, v{v}\n s_cbranch_vccz {l}')
        self.spin(v, vaddr, target, mask, srd, slp)
        self(f'{l}:')
        self.vm, self.total = keep, tot
    def arrive(self, vaddr, mask):
        self(f's_mov_b64 exec, {mask}\n buffer_atomic_add v{vOne}, v{vaddr}, s[8:11], 0 offen sc1\n s_mov_b64 exec, -1')
    def take(self, lst, k=10 ** 6):
        for _ in range(min(k, len(lst))):
            t, tag = lst.pop(0)
            self(t, tag=tag)

def nib(lst):
    return sum(x << (4 * k) for k, x in enumerate(lst))

def round_bf16(e, v, t):
    e(f'v_cvt_pk_bf16_f32 v{t}, v{v}, v{v}\n v_lshlrev_b32 v{v}, 16, v{t}')

class Mix:
    def __init__(self, e, side, period):
        self.e, self.side, self.period, self.n = e, side, period, 0
    def __call__(self, text):
        for line in text.strip().split('\n'):
            if line.strip():
                self.e(line)
                self.n += 1
                if self.n >= self.period and not line.strip().startswith(('s_cmp', 's_cselect')):
                    self.n = 0
                    self.e.take(self.side, 1)

A_MAT, A_G, A_X = 0, 40960, 53248
W_K = 7168
R_BASE = 18 * W_K
R_CS = 20 * W_K
T_STG, X_STG, V_STG = 122880, 147456, 20 * W_K

JMAP = ([0, 3, 4, 7, 5, 6, 1, 2], [8, 11, 12, 13, 14, 15, 9, 10])
vXr = 167
vOob = 159
def roles(e):
    e(f"""
    s_bfe_u32 s60, s2, 0x20001
    s_lshl_b32 s60, s60, 2
    s_bfe_u32 s3, s2, 0x20003
    s_add_u32 s60, s60, s3
    s_bfe_u32 s3, s2, 0x10005
    s_lshl_b32 s50, s22, 1
    s_add_u32 s50, s50, s3
    s_lshr_b32 s37, s50, 1
    s_cmp_eq_u32 s37, 3
    s_cselect_b32 s37, 5, s37
    s_add_u32 s36, s37, 3
    s_lshl_b32 s3, s50, 2
    s_lshr_b32 s61, {nib(JMAP[0] if CFG['jmap'] else range(8))}, s3
    s_lshr_b32 s38, {nib(JMAP[1] if CFG['jmap'] else range(8, 16))}, s3
    s_bitcmp1_b32 s2, 0
    s_cselect_b32 s37, s37, s36
    s_cselect_b32 s61, s38, s61
    s_cselect_b32 s3, 8, 0
    s_and_b32 s61, s61, 15
    s_and_b32 s36, s50, 1
    s_or_b32 s50, s50, s3
    s_sub_u32 s3, 4, s37
    s_cmp_eq_u32 s36, 0
    s_cselect_b32 s38, s37, s3
    """)
    q_of_half(e, 's39', 's36')
    e(d_role('s44', None))
    e(f"""
    s_lshl_b32 s35, s20, 9
    s_add_u32 s35, s35, s39
    s_mul_i32 s35, s35, 1280
    s_lshl_b32 s3, s38, 8
    s_add_u32 s35, s35, s3
    s_lshl_b32 s53, s20, 12
    s_add_u32 s53, s53, {X_STG}
    v_mul_u32_u24 v{vXr}, 40960, v{vG}
    v_xor_b32 v{vT2}, v{vI}, v{vG}
    v_lshl_add_u32 v{vXr}, v{vT2}, 4, v{vXr}
    """)

def w1_setup(e):
    if CFG['skipw1'] or CFG['skipw2'] or CFG['skiph'] or CFG['skiph1']:
        e(f'v_mov_b32 v{vOob}, {OOB}')
    e(f"""
    s_mul_i32 s30, s61, 7
    s_mul_i32 s3, s61, 6
    s_add_u32 s3, s3, 12
    s_cmp_le_u32 s61, 11
    s_cselect_b32 s30, s30, s3
    s_cselect_b32 s47, 14, 12
    s_and_b32 s31, s30, 1
    s_lshl_b32 s32, s30, 5
    s_mul_i32 s3, s20, {32 * 3456}
    s_add_u32 s32, s32, s3
    s_mul_i32 s55, s20, {W_K}
    s_movk_i32 s3, 3456
    """)
    for n in range(7):
        e(f"""
        v_add_u32 v{vT0}, {64 * n}, v{vLane}
        v_mul_u32_u24 v{vT1}, 4682, v{vT0}
        v_lshrrev_b32 v{vT1}, 16, v{vT1}
        v_mad_i32_i24 v{vT0}, v{vT1}, -14, v{vT0}
        v_lshrrev_b32 v{vT2}, 1, v{vT1}
        v_cmp_le_u32 vcc, s47, v{vT0}
        v_xor_b32 v{vT2}, v{vT2}, v{vT1}
        v_and_b32 v{vT2}, 4, v{vT2}
        v_mul_u32_u24 v{vT2}, 3, v{vT2}
        v_xor_b32 v{vT1}, v{vT1}, v{vT2}
        v_lshlrev_b32 v{vT0}, 4, v{vT0}
        v_mad_u32_u24 v{vT0}, v{vT1}, s3, v{vT0}
        v_cndmask_b32 v{vT1}, 0, v{vOne}, vcc
        v_lshl_or_b32 v{vW1 + n}, v{vT1}, 31, v{vT0}
        """)
    e(f"""
    s_mul_i32 s46, s44, 56
    s_mul_i32 s3, s20, 14
    s_add_u32 s46, s46, s3
    s_mul_i32 s46, s46, 5120
    s_add_u32 s46, s46, {W2B}
    s_cmp_eq_u32 s20, 3
    s_cselect_b32 s47, 12, 14
    """)

def d_role(c8, half):
    t = f's_lshr_b32 {c8}, s50, 3\n s_lshl_b32 {c8}, {c8}, 2\n s_and_b32 s3, s50, 3\n s_or_b32 {c8}, {c8}, s3\n'
    return t + (f's_bfe_u32 {half}, s50, 0x10002' if half else '')

def phase_a(e):
    X, F, M0, M1 = 16, 56, 64, 68
    GA, TA, TP, VA, PR = 72, 92, 132, 172, 204
    AF, GR, SM, ONES, PR2 = X, 92, 96, 100, 152
    vXo, vGw, vGr, vSg, vS, vQ = 10, 11, 12, 13, 14, 15
    vS2, vRdy, vP0, vP1, vP4, vPs, vPa, vPb, vPd, vZ = 224, 225, 226, 227, 228, 229, 230, 231, 232, 233
    vD, vD4, vMa, vMb, vHi, vMid = 234, 112, 239, 240, 241, 242
    tmp, vXa, vPv, vPw = 244, VA, 238, 243
    def code_prefetch():
        lp, ln = e.lab('pc'), e.lab('nopf')
        e(f'''
        s_getpc_b64 s[46:47]
        {lp}:
        s_bfe_u32 s3, s2, 0x30003
        v_lshl_add_u32 v{vT0}, v0, 3, s3
        v_lshlrev_b32 v{vT0}, 7, v{vT0}
        v_cmp_gt_u32 vcc, L_done - {lp}, v{vT0}
        s_and_saveexec_b64 s[44:45], vcc
        s_cbranch_execz {ln}
        global_load_dword a255, v{vT0}, s[46:47]
        {ln}:
        s_mov_b64 exec, -1
        ''')
        e.vm.pop()
    e.stamp(0)
    if CFG['padto']:
        e('s_memrealtime s[98:99]')
    e(f'''
    s_load_dwordx2 s[4:5], s[0:1], 0
    s_load_dwordx2 s[8:9], s[0:1], 80
    s_load_dwordx4 s[24:27], s[0:1], 48
    s_load_dwordx4 s[28:31], s[0:1], 64
    s_cmp_ge_u32 s2, 256
    s_cbranch_scc1 L_done
    v_lshrrev_b32 v{vT2}, 6, v0
    v_and_b32 v{vLane}, 63, v0
    v_readfirstlane_b32 s20, v{vT2}
    v_lshrrev_b32 v{vPv}, 3, v{vLane}
    v_and_b32 v{vT1}, 7, v{vLane}
    v_mul_u32_u24 v{vXo}, 81920, v{vPv}
    v_lshlrev_b32 v{vT2}, 1, v{vPv}
    v_and_b32 v{vT2}, 4, v{vT2}
    v_xor_b32 v{vT2}, v{vT2}, v{vT1}
    v_lshl_add_u32 v{vXo}, v{vT2}, 4, v{vXo}
    s_mov_b32 s6, {XB}
    s_mov_b32 s7, 0x20000
    s_and_b32 s21, s2, 63
    s_lshr_b32 s22, s2, 6
    s_xor_b32 s22, s22, 3
    s_mul_i32 s23, s21, 1280
    s_mul_i32 s3, s20, 655360
    s_add_u32 s23, s23, s3
    s_lshl_b32 s52, s20, 10
    s_add_u32 s53, s52, {A_X}
    s_add_u32 s54, s23, 640
    s_add_u32 s55, s53, 20480
    s_bitcmp1_b32 s22, 0
    s_cselect_b32 s62, s54, s23
    s_cselect_b32 s63, s55, s53
    s_cselect_b32 s23, s23, s54
    s_cselect_b32 s53, s53, s55
    ''')
    if CFG['cpf'] and CFG['cpfearly']:
        code_prefetch()
    e(f'''
    s_mov_b32 s10, {WS_BYTES}
    s_mov_b32 s11, 0x20000
    v_mov_b32 v{vZ}, 0
    s_lshl_b32 s3, s20, 3
    s_or_b32 s50, s3, s2
    s_cmp_ge_u32 s50, 8
    s_waitcnt lgkmcnt(0)
    s_cbranch_scc1 LA_nozero
    v_lshlrev_b32 v{vT2}, 8, v{vLane}
    s_lshl_b32 s3, s2, 14
    buffer_store_dword v{vZ}, v{vT2}, s[8:11], s3 offen sc1
    LA_nozero:
    ''', tag='zero')
    for so, mo in (('s62', 's63'), ('s23', 's53')):
        for n in range(5):
            e(f's_add_u32 m0, {mo}, {3968 * n}\n buffer_load_dwordx4 v{vXo}, s[4:7], {so} offen offset:{128 * n} {CFG["xpol"]} lds', tag='x')
    e.stamp(1)
    mx = Mix(e, [], 1000)
    e(f'''
    s_mov_b32 s12, s26
    s_mov_b32 s13, s27
    s_mov_b32 s14, {640 * 3456}
    s_mov_b32 s15, 0x20000
    s_mov_b32 s26, {640 * 3456}
    s_mov_b32 s27, 0x20000
    s_mov_b32 s16, s28
    s_mov_b32 s17, s29
    s_mov_b32 s18, {XB}
    s_mov_b32 s19, 0x20000
    v_and_b32 v{vT0}, 1, v{vLane}
    v_lshrrev_b32 v{vG}, 4, v{vLane}
    v_and_b32 v{vI}, 15, v{vLane}
    v_lshlrev_b32 v{vL16}, 4, v{vLane}
    v_mov_b32 v{vOne}, 1
    ''')
    mx(f'''
    v_lshrrev_b32 v{vHi}, 3, v{vI}
    s_add_u32 s41, s22, 1
    s_cmp_lt_u32 s22, 3
    s_cselect_b32 s41, s41, 0
    s_cselect_b32 s42, 0, 4
    s_cselect_b32 s43, 2, 0
    v_mul_u32_u24 v{vT1}, s42, v{vHi}
    v_add_u32 v{vT1}, s41, v{vT1}
    v_mul_u32_u24 v{vT2}, s43, v{vHi}
    v_mad_u32_u24 v{vT2}, v{vT1}, v{vG}, v{vT2}
    v_cvt_f32_u32 v{vT2}, v{vT2}
    v_mul_f32 v{vT2}, {flit(0.125)}, v{vT2}
    v_cos_f32 v{vT2}, v{vT2}
    v_and_b32 v{vT1}, 1, v{vT1}
    v_lshlrev_b32 v{vT1}, 15, v{vT1}
    v_cvt_pk_bf16_f32 v{tmp}, v{vT2}, 0
    v_mov_b32 v{tmp + 1}, 0
    v_xor_b32 v{tmp + 2}, v{vT1}, v{tmp}
    v_mov_b32 v{tmp + 3}, 0
    v_and_b32 v{vT1}, 3, v{vLane}
    v_lshlrev_b32 v{vT2}, 4, v{vT1}
    v_bfe_u32 v{vMid}, v{vI}, 2, 1
    v_lshlrev_b64 {vr(tmp, 2)}, v{vT2}, {vr(tmp, 2)}
    v_lshlrev_b64 {vr(tmp + 2, 2)}, v{vT2}, {vr(tmp + 2, 2)}
    v_cmp_eq_u32 vcc, 0, v{vMid}
    v_lshlrev_b32 v{vSg}, 31, v{vT0}
    v_lshrrev_b32 v{vT2}, 16, v{vSg}
    ''')
    for h in range(2):
        for k in range(2):
            mx(f'v_cndmask_b32 v{F + 4 * h + k}, 0, v{tmp + 2 * h + k}, vcc\n v_cndmask_b32 v{F + 4 * h + 2 + k}, v{tmp + 2 * h + k}, v{vZ}, vcc')
    mx(f'''
    v_or_b32 v{vSg}, v{vSg}, v{vT2}
    v_bfe_u32 v{vT1}, v{vI}, 1, 1
    v_lshrrev_b32 v{vT2}, 2, v{vI}
    v_lshl_add_u32 v{vT2}, s20, 2, v{vT2}
    v_mul_u32_u24 v{vPs}, 204800, v{vT2}
    v_lshl_add_u32 v{vPs}, v{vT1}, 6, v{vPs}
    v_lshl_add_u32 v{vPs}, v{vT0}, 5, v{vPs}
    v_sub_u32 v{vT3}, 32, v{vT2}
    v_cmp_eq_u32 vcc, 0, v{vT2}
    v_and_b32 v{tmp}, 1, v{vG}
    v_lshrrev_b32 v{tmp + 1}, 1, v{vG}
    v_cndmask_b32 v{vT3}, v{vT3}, 16, vcc
    v_cmp_eq_u32 vcc, 0, v{vT1}
    v_lshl_add_u32 v{vP4}, v{tmp}, 4, v{vPs}
    v_xor_b32 v{vT1}, v{vT1}, v{tmp + 1}
    v_cndmask_b32 v{vT2}, v{vT3}, v{vT2}, vcc
    v_lshl_add_u32 v{vP0}, v{vT1}, 15, v{vP4}
    v_lshl_add_u32 v{vP1}, v{vT1}, 14, v{vP4}
    v_lshl_add_u32 v{vP4}, v{tmp + 1}, 13, v{vP4}
    v_lshl_add_u32 v{vPs}, v{vG}, 3, v{vPs}
    v_lshlrev_b32 v{vGw}, 3, v{tmp}
    v_mad_u32_u24 v{vGw}, v{tmp + 1}, s54, v{vGw}
    v_lshlrev_b32 v{vS2}, 31, v{vT2}
    v_cvt_f32_u32 v{vT2}, v{vT2}
    v_mul_f32 v{vT2}, {flit(1 / 32)}, v{vT2}
    v_cvt_f32_u32 v{vT1}, v{vT0}
    v_fmaak_f32 v{vT1}, {flit(0.25)}, v{vT1}, {flit(0.25)}
    v_lshlrev_b32 v{vT3}, 2, v{vG}
    v_cvt_f32_u32 v{vD4}, v{vT3}
    v_fma_f32 v{tmp}, v{vT2}, v{vD4}, v{vT1}
    v_add_f32 v{tmp + 1}, v{tmp}, v{vT2}
    v_add_f32 v{tmp + 2}, v{tmp + 1}, v{vT2}
    v_add_f32 v{tmp + 3}, v{tmp + 2}, v{vT2}
    v_lshrrev_b32 v{vT1}, 16, v{vS2}
    v_or_b32 v{vS2}, v{vS2}, v{vT1}
    '''.replace('v_mad_u32_u24 v%d, v%d, s54' % (vGw, tmp + 1), 's_movk_i32 s54, 5120\n v_mad_u32_u24 v%d, v%d, s54' % (vGw, tmp + 1)))
    for rr in range(4):
        mx(f'v_sin_f32 v{tmp + 4 + rr}, v{tmp + rr}\n v_cos_f32 v{tmp + 8 + rr}, v{tmp + rr}')
    for k in range(2):
        mx(f'v_cvt_pk_bf16_f32 v{M0 + k}, v{tmp + 4 + 2 * k}, v{tmp + 5 + 2 * k}')
        mx(f'v_cvt_pk_bf16_f32 v{M1 + k}, -v{tmp + 8 + 2 * k}, -v{tmp + 9 + 2 * k}')
    for k in range(2):
        mx(f'v_xor_b32 v{M0 + 2 + k}, v{vS2}, v{M0 + k}\n v_xor_b32 v{M1 + 2 + k}, v{vS2}, v{M1 + k}')
    mx(f'''
    v_lshl_add_u32 v{vT0}, s20, 4, v{vT3}
    v_cvt_f32_u32 v{vD}, v{vT0}
    v_add_f32 v{vD + 1}, 1.0, v{vD}
    v_add_f32 v{vD + 2}, 2.0, v{vD}
    v_add_f32 v{vD + 3}, 1.0, v{vD + 2}
    v_add_u32 v{vMa}, s52, v{vL16}
    v_and_b32 v{vT0}, 7, v{vLane}
    v_lshl_add_u32 v{vT1}, s20, 3, v{vT0}
    s_movk_i32 s54, 160
    v_mad_u32_u24 v{vGw}, v{vT1}, s54, v{vGw}
    v_lshl_add_u32 v{vGw}, v{vHi}, 4, v{vGw}
    v_lshrrev_b32 v{vT1}, 2, v{vLane}
    v_mul_u32_u24 v{vGr}, 160, v{vT1}
    v_and_b32 v{vT2}, 3, v{vLane}
    v_lshl_add_u32 v{vGr}, v{vT2}, 3, v{vGr}
    v_lshl_add_u32 v{vT1}, v{vT0}, 7, s52
    v_lshlrev_b32 v{vT0}, 5, v{vT0}
    v_and_b32 v{vT0}, 0x40, v{vT0}
    v_mad_u32_u24 v{vT2}, v{vG}, 10, v{vHi}
    s_movk_i32 s54, {A_X >> 5}
    v_lshl_add_u32 v{vT2}, v{vT2}, 4, s54
    s_movk_i32 s54, 0x70
    s_movk_i32 s55, 0xfff
    ''')
    for m in range(5):
        if m:
            mx(f'v_add_u32 v{vT2}, 32, v{vT2}')
        mx(f'''
        v_xor_b32 v{vT3}, v{vT0}, v{vT2}
        v_lshlrev_b32 v{tmp}, 5, v{vT2}
        v_and_or_b32 v{vT3}, v{vT3}, s54, v{vT1}
        v_bfi_b32 v{vXa + m}, s55, v{vT3}, v{tmp}
        ''')
    e('s_mov_b32 s56, s30\n s_mov_b32 s57, s31\n s_mov_b32 s58, 256\n s_mov_b32 s59, 0x20000\n s_mov_b32 s51, 0x3f803f80')
    e.stamp(9, 'A')
    def body(sig3):
        tl = [(0, 0, 64, 8), (0, 4, 64, 8), (0, 16, 32, 8), (0, 20, 32, 8), (0, 32, 8, 4)]
        tl += [(4, 0, 16, 8), (4, 4, 16, 8), (4, 32, 8, 4)] if sig3 else []
        def touch_chip():
            e(f'''
            s_lshl_b32 s3, s2, 2
            s_add_u32 s3, s3, s20
            s_mul_i32 s3, s3, {17 * 128}
            v_lshlrev_b32 v{vT2}, 7, v{vLane}
            s_bfm_b64 exec, 17, 0
            buffer_load_dword a254, v{vT2}, s[24:27], s3 offen {CFG['tpol']}
            s_mov_b64 exec, -1
            ''')
        def task_loads():
            if CFG['touch'] == 1:
                touch_chip()
            if CFG['touch'] >= 2:
                e(f'''
                s_lshr_b32 s3, s2, 3
                s_lshl_b32 s3, s3, 2
                s_add_u32 s3, s3, s20
                s_mul_i32 s3, s3, {5 * 3456}
                s_and_b32 s33, s2, 1
                s_mul_i32 s33, s33, 1792
                s_add_u32 s3, s3, s33
                s_bfm_b64 exec, 56, 0
                buffer_load_dword a254, v{vPv}, s[24:27], s3 offen {CFG['tpol']}
                ''')
                if CFG['touch'] == 3:
                    e(f's_add_u32 s3, s3, {4 * 3456}\n s_bfm_b64 exec, 14, 0\n buffer_load_dword a253, v{vPv}, s[24:27], s3 offen {CFG["tpol"]}')
                e('s_mov_b64 exec, -1')
        def part(fe, d, c0, addr, off):
            for r in range(0, 4, 2):
                e(f'v_pk_mul_f32 {vr(tmp + r, 2)}, {vr(d + r, 2)}, {vr(fe, 2)} op_sel_hi:[1,0]')
            for r in range(4):
                e(f'v_cos_f32 v{tmp + 4 + r}, v{tmp + r}\n v_sin_f32 v{tmp + 8 + r}, v{tmp + r}')
            for k in range(4):
                e(f'v_cvt_pk_bf16_f32 v{c0 + k}, v{tmp + 4 + 2 * k}, v{tmp + 5 + 2 * k}')
            e(f'ds_write_b128 v{addr}, {vr(c0, 4)} offset:{off}')
        def lanepart(dst, dmid, dhi, add):
            e(f'''
            v_and_b32 v{dst}, 3, v{vI}
            v_mad_u32_u24 v{dst}, v{vMid}, {dmid}, v{dst}
            v_mad_u32_u24 v{dst}, v{vHi}, {dhi}, v{dst}
            v_lshl_add_u32 v{dst}, v{dst}, 3, {add}
            v_cvt_f32_u32 v{dst}, v{dst}
            v_mul_f32 v{dst}, {flit(1 / 640)}, v{dst}
            ''')
        def last_step(it):
            sub = [tl[min(4 * it + w, len(tl) - 1)] for w in range(4)]
            pk = lambda f: sum(f(t) << (8 * w) for w, t in enumerate(sub))
            e(f'''
            s_lshl_b32 s3, s20, 3
            s_lshr_b32 s42, {pk(lambda t: t[2])}, s3
            s_and_b32 s42, s42, 255
            s_lshr_b32 s43, {pk(lambda t: t[3])}, s3
            s_and_b32 s43, s43, 255
            s_lshr_b32 s44, {pk(lambda t: (t[0] + 8 * t[1]) // 4)}, s3
            s_and_b32 s44, s44, 255
            s_lshl_b32 s44, s44, 2
            s_add_u32 s44, s44, s41
            s_mul_i32 s45, s20, 5120
            ''')
            lanepart(vT0, 's43', 's42', 's44')
            e(f'v_add_u32 v{vMb}, s45, v{vL16}')
            part(vT0, vD4, TA + 8, vMb, A_MAT + 20480 * it + 4096)
        e(f'v_cvt_f32_u32 v{vD4}, v{vG}\n v_fmaak_f32 v{vD4}, 4.0, v{vD4}, {flit(64.0)}')
        e(f'v_add_f32 v{vD4 + 1}, 1.0, v{vD4}\n v_add_f32 v{vD4 + 2}, 2.0, v{vD4}\n v_add_f32 v{vD4 + 3}, 1.0, v{vD4 + 2}')
        last = None
        for a, (ko, base, dhi, dmid) in enumerate(tl):
            if (dhi, dmid) != last:
                last = (dhi, dmid)
                lanepart(vT1, dmid, dhi, 's41')
            e(f'v_add_f32 v{vT0}, {flit((ko + 8 * base) / 640)}, v{vT1}')
            part(vT0, vD, TA + 4 * (a % 2), vMa, A_MAT + 5120 * a)
            if a == 0 and sig3:
                l = e.lab('rdy')
                keep = list(e.vm)
                e(f's_cmp_ge_u32 s50, 8\n s_cbranch_scc1 {l}')
                e.wait(vm='zero')
                e(f's_lshl_b32 s3, s2, 2\n s_mov_b64 exec, 1\n buffer_store_dword v{vOne}, v{vZ}, s[56:59], s3 offen sc1\n s_mov_b64 exec, -1\n {l}:')
                e.vm = keep
            if a == CFG['ta'] and CFG['touch'] >= 2:
                touch_chip()
            if a == 1:
                last_step(0)
            if a == 3:
                l = e.lab('ls')
                if not sig3:
                    e(f's_cmp_lg_u32 s20, 0\n s_cbranch_scc1 {l}')
                last_step(1)
                e(f'{l}:')
            if a in (0, 4):
                e.stamp(10 + a // 4, 'A')
        if not sig3 and CFG['hoist'] >= 1:
            roles(e)
        if not sig3 and CFG['hoist'] >= 2:
            w1_setup(e)
        if CFG['touch'] >= 2:
            e(f'''
            v_mul_u32_u24 v{vT0}, 4682, v{vLane}
            v_lshrrev_b32 v{vT0}, 16, v{vT0}
            v_mul_u32_u24 v{vPv}, {3456 - 14 * 128}, v{vT0}
            v_lshl_add_u32 v{vPv}, v{vLane}, 7, v{vPv}
            ''')
        e(f'''
        v_sub_u32 v{vT0}, v{vI}, v{vG}
        v_mad_i32_i24 v{vT0}, v{vG}, -3, v{vT0}
        v_cmp_eq_u32 s[0:1], 0, v{vT0}
        v_cmp_eq_u32 s[62:63], 1, v{vT0}
        v_cmp_eq_u32 s[100:101], 2, v{vT0}
        v_cmp_eq_u32 s[28:29], 3, v{vT0}
        s_mov_b32 s48, {flit(1 / 640)}
        ''')
        for k in range(4):
            e(f'v_mov_b32 v{ONES + k}, s51')
        e('s_waitcnt lgkmcnt(0)\n s_barrier')
        e.stamp(2)
        e.wait(vm='x')
        e.stamp(3)
        order = [(m, h) for m in range(5) for h in range(2)]
        xr = lambda m, h: X + 8 * m + 4 * h
        for (m, h) in order:
            e(f'ds_read_b128 {vr(xr(m, h), 4)}, v{vXa + m} offset:{20480 * h}', tag=f'x{m}{h}')
        if CFG['tat'] == 1:
            task_loads()
        mats = [(f'ds_read_b128 {vr(20 * a + 4 * n, 4, "a")}, v{vL16} offset:{A_MAT + 5120 * a + 1024 * n}', f'm{a}')
                for a in range(len(tl)) for n in range(5)]
        for n, (m, h) in enumerate(order):
            x = xr(m, h)
            e.wait(lg=f'x{m}{h}')
            e(f'{MF} {vr(GR, 4)}, {vr(x, 4)}, {vr(x, 4)}, {vr(GR, 4) if n else 0}')
            e.take(mats, 1)
            e(f'{MF} {vr(SM, 4)}, {vr(ONES, 4)}, {vr(x, 4)}, {vr(SM, 4) if n else 0}')
            e.take(mats, 1 if n >= 3 else 0)
        e.stamp(4)
        fold = [(f'{MF} {vr(GA + 4 * m, 4)}, {vr(F + 4 * h, 4)}, {vr(xr(m, h), 4)}, {vr(GA + 4 * m, 4) if h else 0}', None) for h in range(2) for m in range(5)]
        e.take(fold, 3)
        e.take(mats, 8)
        mg = Mix(e, fold, 2)
        mg(f'''
        v_cndmask_b32 v{vQ}, 0, v{GR}, s[0:1]
        v_cndmask_b32 v{vQ}, v{vQ}, v{GR + 1}, s[62:63]
        v_cndmask_b32 v{vQ}, v{vQ}, v{GR + 2}, s[100:101]
        v_cndmask_b32 v{vQ}, v{vQ}, v{GR + 3}, s[28:29]
        v_add_f32_dpp v{vS}, v{SM}, v{SM} row_ror:8 row_mask:0xf bank_mask:0xf
        v_mov_b32 v{vS2}, v{vQ}
        v_mul_f32 v{vS}, {flit(1 / 640)}, v{vS}
        v_permlane32_swap_b32 v{vS2}, v{vQ}
        v_add_f32 v{vQ}, v{vS2}, v{vQ}
        v_mov_b32 v{vS2}, v{vQ}
        v_permlane16_swap_b32 v{vS2}, v{vQ}
        v_add_f32 v{vQ}, v{vS2}, v{vQ}
        v_mul_f32 v{vS2}, v{vS}, v{vS}
        v_add_f32_dpp v{vQ}, v{vQ}, v{vQ} row_ror:8 row_mask:0xf bank_mask:0xf
        v_fma_f32 v{vQ}, v{vQ}, s48, -v{vS2}
        v_max_f32 v{vQ}, 0, v{vQ}
        v_add_f32 v{vQ}, {flit(1e-5)}, v{vQ}
        v_rsq_f32 v{vQ}, v{vQ}
        ''')
        e.take(fold)
        if sig3:
            e(f'v_cmp_gt_u32 vcc, 32, v{vLane}')
            round_bf16(e, vS, vS2)
            e(f'v_mul_f32 v{vS}, {flit(-8.0)}, v{vS}\n v_mul_f32 v{vS}, v{vS}, v{vQ}\n v_cndmask_b32 v{vS}, 0, v{vS}, vcc')
        for m in range(5):
            g = GA + 4 * m
            for k in range(2):
                if sig3:
                    e(f'v_pk_fma_f32 {vr(g + 2 * k, 2)}, {vr(g + 2 * k, 2)}, {vr(vS, 2)}, {vr(vS, 2)} op_sel:[0,1,0] op_sel_hi:[1,1,0]')
                else:
                    e(f'v_pk_mul_f32 {vr(g + 2 * k, 2)}, {vr(g + 2 * k, 2)}, {vr(vS, 2)} op_sel:[0,1] op_sel_hi:[1,1]')
            e(f'v_cvt_pk_bf16_f32 v{g}, v{g}, v{g + 1}\n v_cvt_pk_bf16_f32 v{g + 1}, v{g + 2}, v{g + 3}')
            e(f'ds_write_b64 v{vGw}, {vr(g, 2)} offset:{A_G + 32 * m}', tag='gw')
        e.wait(lg='gw')
        e('s_barrier')
        e.stamp(5)
        for tau in range(5):
            for c in range(2):
                b = AF + 8 * tau + 4 * c
                for u in range(2):
                    e(f'ds_read_b64_tr_b16 {vr(b + 2 * u, 2)}, v{vGr} offset:{A_G + 5120 * c + 2560 * u + 32 * tau}', tag=f'g{tau}{c}')
        if CFG['tat'] == 2:
            task_loads()
        for tau in range(5):
            for c in range(2):
                b = AF + 8 * tau + 4 * c
                e.wait(lg=f'g{tau}{c}')
                if sig3:
                    e(f'{MF} {vr(TA + 20 * c + 4 * tau, 4)}, {vr(b, 4)}, {vr(M0, 4)}, 0')
                else:
                    t = vr(TA + 4 * tau, 4)
                    e(f'{MF} {t}, {vr(b, 4)}, {vr(M1 if c else M0, 4)}, {t if c else 0}')
        e(f's_lshl_b32 s42, s21, 7\n s_add_u32 s42, s42, {VB}\n s_mul_i32 s3, s41, 40960\n s_add_u32 s42, s42, s3')
        def pack(s):
            out = []
            for tau in range(5):
                t = TA + 20 * s + 4 * tau
                o = TP + 20 * s + 4 * tau
                for k in range(2):
                    out.append((f'v_cvt_pk_bf16_f32 v{o + k}, v{t + 2 * k}, v{t + 2 * k + 1}', None))
                if tau:
                    out += xors
                xors = [(f'v_xor_b32_dpp v{o + 2 + k}, v{o + k}, v{vSg} quad_perm:[1,0,3,2] row_mask:0xf bank_mask:0xf', None) for k in range(2)]
            return out + xors
        p0 = pack(0)
        e.take(p0, 6)
        e.stamp(6)
        groups = [((0, 1), 0, vP0, 0), ((2, 3), 0, vP1, 8192), ((4,), 0, vPs, 16384)]
        if sig3:
            groups += [((5, 6), 1, vP4, 4 * 40960), ((7,), 1, vPs, 4 * 40960 + 16384)]
        def finish(g):
            tls, s, va, so = g
            o = VA + 4 * tls[0]
            out = []
            for n, a in enumerate(tls):
                for k in range(2):
                    out.append((f'v_cvt_pk_bf16_f32 v{o + 2 * n + k}, v{VA + 4 * a + 2 * k}, v{VA + 4 * a + 2 * k + 1}', None))
            out.append((f's_add_u32 s43, s42, {so}\n buffer_store_dwordx{2 * len(tls)} {vr(o, 2 * len(tls))}, v{va}, s[8:11], s43 offen {CFG["vpol"]}', 'vst'))
            if CFG['nov']: out.pop()
            return out
        e(f'v_and_b32 v{vZ}, 7, v{vLane}\n v_lshlrev_b32 v{vZ}, 2, v{vZ}\n buffer_load_dword v{vRdy}, v{vZ}, s[56:59], 0 offen sc1', tag='rdy')
        fill = p0 + (pack(1) if sig3 else [])
        for gi, g in enumerate(groups):
            seq = [(a, n) for n in range(5) for a in g[0]]
            for k, (a, n) in enumerate(seq):
                d = vr(VA + 4 * a, 4)
                while any(t == f'm{a}' for _, t in mats):
                    e.take(mats, 1)
                e.wait(lg=f'm{a}')
                e(f'{MF} {d}, {vr(20 * a + 4 * n, 4, "a")}, {vr(TP + 20 * g[1] + 4 * n, 4)}, {d if n else 0}')
                if k == 2 and gi > 0:
                    fill = finish(groups[gi - 1]) + fill
                if gi == 0 and k < 7:
                    e.take(fill, 2)
                elif fill:
                    e.take(fill, 1); e.take(mats, 1)
                else:
                    e.take(mats, 2)
            if gi == 2:
                e.take(fill)
        e.take(fill + finish(groups[-1]))
        e.stamp(7)
        leave_a(e, sig3)
    e('s_cmp_eq_u32 s22, 3\n s_cbranch_scc1 LA_sig3')
    vm0, lg0 = list(e.vm), list(e.lg)
    body(False)
    e('s_branch LA_end\n LA_sig3:')
    e.vm, e.lg = list(vm0), list(lg0)
    body(True)
    e('LA_end:')

W2V, vL16x = 176, 10
def w2reg(n, a):
    if n < 4:
        return vr(160 + 20 * n + 4 * a, 4, 'a')
    if n < 8:
        return vr(W2V + 20 * (n - 4) + 4 * a, 4)
    r = 48 + 20 * (n - 8) + 4 * a
    return vr(r, 4, 'a') if r < 160 else vr(132 + r - 160, 4)
def ringreg(n, rt):
    if n >= 10:
        return vr(160 + 16 * (n - 10) + 4 * rt, 4, 'a')
    s = n % 4
    return vr(240 + 4 * rt, 4, 'a') if s == 0 else vr(16 * (s - 1) + 4 * rt, 4, 'a')
def w2_loads(n):
    return [((f's_add_u32 s62, s46, {5120 * n + 4096 * (a // 4)}\n' if a % 4 == 0 else '') +
             f'buffer_load_dwordx4 {w2reg(n, a)}, v{vOob if CFG["skipw2"] else vL16x if n in (8, 9) else vL16}, s[8:11], s62 offen offset:{1024 * (a % 4)} {LD}', f'w2_{n}') for a in range(5)]

vPre2, vBarA, vPk2, vW1 = 11, 12, 15, 160
def w1_step(i):
    head = (f's_add_u32 s53, s60, {i}\n s_and_b32 s53, s53, 3\n' if i < 4 and CFG['rot'] else f's_mov_b32 s53, {i}\n') + \
        f's_mul_i32 s33, s53, {4 * 32 * 3456}\n s_add_u32 s33, s33, s32\n s_mul_i32 s53, s53, {4 * W_K}\n s_add_u32 s53, s53, s55\n'
    return [((head if n == 0 else '') +
             f's_add_u32 m0, s53, {1024 * n}\n buffer_load_dwordx4 v{vOob if CFG["skipw1"] else vW1 + n}, s[24:27], s33 offen {CFG["w1pol"]} lds', 'w1') for n in range(7)]

def guarded(e, cond, items):
    l = e.lab('opt')
    kv, kl, tot = list(e.vm), list(e.lg), e.total
    e(f'{cond}\n s_cbranch_scc0 {l}')
    for t in items:
        e(t[0] if isinstance(t, tuple) else t)
    e(f'{l}:')
    e.vm, e.lg, e.total = kv, kl, tot

def leave_a(e, sig3):
    vRdy, vZ = 225, 233
    w0 = 0 if sig3 else CFG['w0']
    if sig3 or CFG['hoist'] < 1:
        roles(e)
    if not sig3:
        guarded(e, 's_cmp_lt_u32 s37, 5',
                [f's_add_u32 m0, s53, {1024 * n}\n buffer_load_dwordx4 v{vXr}, s[4:7], s35 offen {CFG["rpol"]} lds\n' +
                 (f's_add_u32 s35, s35, {4 * 40960}\n v_xor_b32 v{vXr}, {64 if n % 2 == 0 else 192}, v{vXr}' if n < 3 else '') for n in range(4)])
    task_start(e, 0)
    if sig3:
        e(f's_mov_b32 s43, {OOB}')
    else:
        task_start(e, 1)
        if CFG['hoist'] < 2:
            w1_setup(e)
        e('s_barrier')
        e.take([l for i in range(4) for l in w1_step(i)], w0)
    e(f"""
    s_bfe_u32 s3, s2, 0x40003
    v_lshl_add_u32 v{vBarA}, v{vLane}, 4, s3
    v_lshlrev_b32 v{vBarA}, 8, v{vBarA}
    s_lshl_b32 s3, s44, 2
    s_add_u32 s3, s3, s20
    s_add_u32 s3, s3, {C_PRE2}
    s_lshl_b32 s3, s3, 8
    v_mov_b32 v{vPre2}, s3
    """)
    e(f's_waitcnt vmcnt({w0 + 5})')
    if not sig3:
        guarded(e, 's_cmp_lt_u32 s37, 5', [f's_waitcnt vmcnt({w0 + 4})'])
    guarded(e, f's_cmp_lt_u32 s37, 5\n s_cselect_b32 s3, 0, s41\n s_cmp_eq_u32 s3, {OOB}', [f's_waitcnt vmcnt({w0})'])
    e.stamp(12, 'A')
    e.vm = []
    e.confirm(vRdy, vZ, 1, 'rdy', 's[56:59]', mask='0xff')
    e('s_barrier')
    guarded(e, 's_cmp_eq_u32 s20, 0', [f's_mov_b64 exec, 0xff\n buffer_atomic_add v{vOne}, v{vBarA}, s[8:11], 0 offen sc1\n s_mov_b64 exec, -1'])
    e.stamp(8)
    if sig3:
        w1_setup(e)
        e.take([l for i in range(4) for l in w1_step(i)], CFG['w0'])

def task_start(e, it):
    inv_lo = [IDX_LO.index(k) for k in range(14)]
    inv_hi = [IDX_HI.index(k) if k in IDX_HI else 15 for k in range(14)]
    l = e.lab('notask')
    kv, tot = list(e.vm), e.total
    d, c = f's{40 + 2 * it}', f's{41 + 2 * it}'
    e(f"""
    s_mov_b32 {c}, {OOB}
    s_lshr_b32 s35, s2, 1
    s_add_u32 s35, s35, {32 + 32 * it}
    s_cmp_lt_u32 s2, 64
    s_cselect_b32 s35, {'s2' if it == 0 else 112}, s35
    s_cmp_lt_u32 s37, 5
    s_cselect_b32 s35, 112, s35
    s_cmp_ge_u32 s35, 112
    s_cbranch_scc1 {l}
    s_bfe_u32 s62, s35, 0x20001
    s_lshr_b32 s63, s35, 3
    s_and_b32 s35, s35, 1
    s_mov_b32 s0, {nib(inv_lo) & 0xffffffff}
    s_mov_b32 s1, {nib(inv_lo) >> 32}
    s_mov_b32 s28, {nib(inv_hi) & 0xffffffff}
    s_mov_b32 s29, {nib(inv_hi) >> 32}
    s_cmp_lt_u32 s62, 3
    s_cselect_b64 s[0:1], s[0:1], s[28:29]
    s_lshl_b32 s3, s63, 2
    s_lshr_b64 s[0:1], s[0:1], s3
    s_and_b32 s0, s0, 15
    s_cmp_eq_u32 s0, 15
    s_cbranch_scc1 {l}
    s_mul_i32 s34, s62, 14
    s_add_u32 s0, s0, s34
    s_lshl_b32 s0, s0, 2
    s_add_u32 s0, s0, s20
    s_mul_i32 s33, s0, {8 * 1280}
    s_mul_i32 s3, s35, 640
    s_add_u32 s33, s33, s3
    s_lshl_b32 s35, s35, 2
    s_add_u32 s35, s35, s20
    s_mul_i32 {d}, s35, 56
    s_add_u32 {d}, {d}, s34
    s_add_u32 {d}, {d}, s63
    s_mul_i32 {d}, {d}, 5120
    s_add_u32 {d}, {d}, {W2B}
    s_lshl_b32 {c}, s35, 2
    s_add_u32 {c}, {c}, s62
    s_add_u32 {c}, {c}, {C_PRE2}
    s_lshl_b32 {c}, {c}, 8
    s_mul_i32 s34, s20, 5120
    s_add_u32 s34, s34, {T_STG + 20480 * it}
    v_lshrrev_b32 v{vT0}, 3, v{vLane}
    v_mul_u32_u24 v{vT0}, 1280, v{vT0}
    v_and_b32 v{vT2}, 7, v{vLane}
    v_lshl_add_u32 v{vT0}, v{vT2}, 4, v{vT0}
    """)
    for n in range(5):
        e(f's_add_u32 m0, s34, {896 * n}\n buffer_load_dwordx4 v{vT0}, s[12:15], s33 offen offset:{128 * n} {CFG["wpol"]} lds')
    e(f'{l}:')
    e.vm, e.total = kv, tot

def task_finish(e, loads):
    vPa, PR = 16, 176
    e(f"""
    v_bfe_u32 v{vT2}, v{vLane}, 2, 3
    v_lshlrev_b32 v{vT2}, 7, v{vT2}
    v_lshrrev_b32 v{vT3}, 5, v{vLane}
    s_movk_i32 s3, 5120
    v_mad_u32_u24 v{vT2}, v{vT3}, s3, v{vT2}
    v_add_u32 v{vT2}, {T_STG}, v{vT2}
    s_mul_i32 s3, s20, 10
    v_and_b32 v{vT3}, 3, v{vLane}
    v_add_u32 v{vPa}, s3, v{vT3}
    v_add_u32 v{vPa + 1}, 4, v{vPa}
    v_bfe_u32 v{vT3}, v{vLane}, 1, 1
    v_add3_u32 v{vPa + 2}, s3, v{vT3}, 8
    """)
    for k in range(3):
        e(f"""
        v_lshrrev_b32 v{vT3}, 3, v{vPa + k}
        v_and_b32 v{vPa + k}, 7, v{vPa + k}
        v_lshl_add_u32 v{vPa + k}, v{vPa + k}, 4, v{vT2}
        v_lshl_add_u32 v{vPa + k}, v{vT3}, 10, v{vPa + k}
        """)
    e(f'v_and_b32 v{vT3}, 1, v{vLane}\n v_lshl_add_u32 v{vPa + 2}, v{vT3}, 3, v{vPa + 2}\n s_waitcnt vmcnt({CFG["w0"]})\n s_barrier')
    e.stamp(9)
    for it in range(2):
        d = f's{40 + 2 * it}'
        items = [f'ds_read_b64_tr_b16 {vr(PR + 4 * a + 2 * v, 2)}, v{vPa + (a >> 1)} offset:{20480 * it + 8 * (a & 1) + 10240 * v}' for a in range(5) for v in range(2)]
        items += ['s_waitcnt lgkmcnt(0)']
        items += [f'buffer_store_dwordx4 {vr(PR + 4 * a, 4)}, v{vL16}, s[8:11], {d} offen offset:{1024 * a} {ST}' for a in range(4)]
        items += [f's_add_u32 {d}, {d}, 4096\n buffer_store_dwordx4 {vr(PR + 16, 4)}, v{vL16}, s[8:11], {d} offen {ST}\n s_nop 1']
        guarded(e, f's_cmp_lg_u32 s{41 + 2 * it}, {OOB}', items)
    e.stamp(10)
    e.take(loads, CFG['w1a'])
    e(f's_waitcnt vmcnt({CFG["w1a"]})\n v_mov_b32 v{vT2}, s41\n v_mov_b32 v{vT3}, s43')
    e.arrive(vT2, 1)
    e.arrive(vT3, 1)
    e.stamp(11)

def w1_finish(e, loads):
    e.take(loads)
    e('s_barrier')
    guarded(e, 's_cmp_lt_u32 s20, 2', w1_step(4))

def q_of_half(e, dst, half):
    e(f'''
    s_sub_u32 s3, 32, s60
    s_cmp_eq_u32 s60, 0
    s_cselect_b32 s3, 16, s3
    s_cmp_eq_u32 {half}, 0
    s_cselect_b32 {dst}, s60, s3
    ''')

def phase_b(e, w1l, w2l):
    aD, aM, a0, a4, vMk, vHo, vSo, vV1, vV0, vV4, vBar, vMk4 = range(16, 28)
    XR, AC, W, WM, W4, FB, tmp, H = 28, 44, 76, 92, 108, 124, 40, 124
    e(f'''
    v_lshlrev_b32 v{vT1}, 2, v{vG}
    v_xor_b32 v{vT1}, v{vT1}, v{vI}
    v_lshlrev_b32 v{vT1}, 4, v{vT1}
    v_lshl_add_u32 v{vT1}, v{vI}, 8, v{vT1}
    s_lshl_b32 s3, s20, 12
    s_add_u32 s3, s3, {X_STG}
    v_add_u32 v{vT1}, s3, v{vT1}
    ''')
    e(f'v_mov_b32 v{vBar}, v{vT1}')
    tot0 = e.total
    e(f'v_lshl_add_u32 v{vT0}, s20, 4, v{vI}\n v_lshl_add_u32 v{vT0}, v{vT0}, 5, s39')
    e(f'''
    v_cvt_f32_u32 v{vT0}, v{vT0}
    v_mul_f32 v{vT0}, {flit(1 / 2048)}, v{vT0}
    v_and_b32 v{vT1}, 1, v{vG}
    v_lshlrev_b32 v{vMk}, 31, v{vT1}
    v_lshrrev_b32 v{vT2}, 16, v{vMk}
    v_or_b32 v{vMk}, v{vMk}, v{vT2}
    v_lshrrev_b32 v{vT2}, 5, v{vLane}
    v_lshlrev_b32 v{vSo}, 6, v{vI}
    v_lshl_add_u32 v{vSo}, v{vT2}, 2, v{vSo}
    v_lshlrev_b32 v{vT2}, 3, v{vT2}
    v_cvt_f32_u32 v{FB}, v{vT2}
    v_bfe_u32 v{vT3}, v{vLane}, 2, 2
    v_add_u32 v{vT2}, v{vT2}, v{vT3}
    v_lshlrev_b32 v{a0}, 5, v{vT1}
    v_add_u32 v{a0}, {V_STG}, v{a0}
    v_lshl_add_u32 v{aD}, v{vT2}, 7, v{a0}
    v_lshl_add_u32 v{a0}, v{vT2}, 6, v{a0}
    v_lshrrev_b32 v{vT3}, 1, v{vT3}
    v_xor_b32 v{vT2}, 1, v{vT3}
    v_lshl_add_u32 v{aM}, v{vT2}, 6, v{aD}
    v_lshl_add_u32 v{aD}, v{vT3}, 6, v{aD}
    v_and_b32 v{vT2}, 3, v{vLane}
    v_xor_b32 v{vT3}, 3, v{vT2}
    v_lshl_add_u32 v{aD}, v{vT2}, 3, v{aD}
    v_lshl_add_u32 v{aM}, v{vT3}, 3, v{aM}
    v_lshl_add_u32 v{a4}, v{vT3}, 3, v{a0}
    v_lshl_add_u32 v{a0}, v{vT2}, 3, v{a0}
    v_cvt_f32_u32 v{vT1}, v{vT1}
    v_sub_f32 v{vT1}, 1.0, v{vT1}
    v_mul_f32 v{vT1}, {flit(0.25)}, v{vT1}
    v_fma_f32 v{vT1}, v{vT0}, v{FB}, v{vT1}
    s_cmp_le_u32 s38, 2
    s_cselect_b32 s3, 0, -1
    s_cselect_b64 s[40:41], -1, 0
    v_and_b32 v{vMk4}, s3, v{vMk}
    v_cndmask_b32 v{a4}, v{a4}, v{a0}, s[40:41]
    ''')
    left = [w1l.pop() for _ in range(CFG['w1left'])][::-1]
    mx = Mix(e, w1l, CFG['bmix'])
    for ks in range(4):
        for n in range(8):
            mx(f'v_fmamk_f32 v{FB + n}, v{vT0}, {flit(16 * ks + n)}, v{vT1}')
        for n in range(8):
            mx(f'v_sin_f32 v{FB + n}, v{FB + n}')
        for k in range(4):
            mx(f'v_cvt_pk_bf16_f32 v{W + 4 * ks + k}, v{FB + 2 * k}, v{FB + 2 * k + 1}')
    for k in range(16):
        mx(f'v_xor_b32 v{WM + k}, v{vMk}, v{W + k}\n v_xor_b32 v{W4 + k}, v{vMk4}, v{W + k}')
    e(f's_waitcnt vmcnt({e.total - tot0 + CFG["w0"]})')
    for r in range(4):
        e((f'v_xor_b32 v{vBar}, {16 if r % 2 else 48}, v{vBar}\n' if r else '') + f'ds_read_b128 {vr(XR + 4 * r, 4)}, v{vBar}', tag='xr')
    e.wait(lg='xr')
    for r in range(4):
        for k in range(8):
            d = AC + 4 * k + (r if k <= 4 else 3 - r)
            x = XR + 4 * r + k // 2
            mx(f'v_lshlrev_b32 v{d}, 16, v{x}' if k % 2 == 0 else f'v_and_b32 v{d}, 0xffff0000, v{x}')
    e(f'''
    s_lshl_b32 s40, s37, 13
    s_lshl_b32 s3, s36, 6
    s_add_u32 s40, s40, s3
    s_xor_b32 s41, s40, 64
    s_sub_u32 s42, 4, s37
    s_lshl_b32 s42, s42, 13
    s_add_u32 s42, s42, s3
    s_xor_b32 s43, s3, 64
    s_cmp_eq_u32 s60, 0
    s_cselect_b32 s41, s42, s41
    s_cselect_b32 s42, s3, s43
    s_sub_u32 s43, 4, s38
    s_cmp_le_u32 s38, 2
    s_cselect_b32 s42, s3, s42
    s_cselect_b32 s43, s38, s43
    s_lshl_b32 s43, s43, 13
    s_add_u32 s42, s42, s43
    v_lshrrev_b32 v{vT0}, 3, v0
    v_and_b32 v{vT1}, 3, v0
    v_lshlrev_b32 v{vT1}, 4, v{vT1}
    v_lshl_add_u32 v{vV1}, v{vT0}, 7, v{vT1}
    v_lshrrev_b32 v{vT2}, 2, v0
    v_lshl_add_u32 v{vV0}, v{vT2}, 7, v{vT1}
    v_lshrrev_b32 v{vT0}, 1, v{vT0}
    v_xor_b32 v{vT0}, v{vT0}, v{vT2}
    v_and_b32 v{vT0}, 1, v{vT0}
    v_cmp_eq_u32 vcc, 0, v{vT0}
    v_mov_b32 v{vT1}, s41
    v_mov_b32 v{vT2}, s40
    v_cndmask_b32 v{vT1}, v{vT1}, v{vT2}, vcc
    v_add_u32 v{vV1}, v{vV1}, v{vT1}
    v_add_u32 v{vV4}, s42, v{vV0}
    v_add_u32 v{vV0}, s40, v{vV0}
    s_mul_i32 s40, s60, 204800
    s_add_u32 s40, s40, {VB}
    s_add_u32 s41, s52, {V_STG}
    v_lshlrev_b32 v{vMk}, 4, v0
    v_add_u32 v{vMk}, {V_STG}, v{vMk}
    s_lshl_b32 s3, s36, 2
    s_lshl_b32 s42, s60, 3
    s_add_u32 s42, s42, s3
    s_add_u32 s42, s42, s20
    s_lshr_b32 s45, s42, 1
    s_add_u32 s45, s45, {C_BC}
    s_lshl_b32 s45, s45, 8
    s_lshl_b32 s43, s42, 7
    s_add_u32 s43, s43, s38
    s_lshl_b32 s43, s43, 3
    s_add_u32 s43, s43, {SB}
    s_cmp_eq_u32 s38, 4
    s_cselect_b32 s34, 0xffff0000, 0
    s_mov_b32 s35, s34
    v_cndmask_b32 v{vT0}, 0, 8, s[34:35]
    v_add_u32 v{vSo}, v{vSo}, v{vT0}
    s_mul_i32 s42, s42, 20480
    s_lshl_b32 s3, s38, 12
    s_add_u32 s42, s42, s3
    s_add_u32 s42, s42, {HB}
    v_lshlrev_b32 v{vHo}, 4, v{vI}
    v_lshl_add_u32 v{vHo}, v{vG}, 10, v{vHo}
    s_and_b32 s3, s2, 7
    s_lshl_b32 s3, s3, 4
    v_add_u32 v{vBar}, s3, v{vLane}
    v_lshlrev_b32 v{vBar}, 8, v{vBar}
    ''')
    def swap4():
        l = e.lab('sw')
        e(f's_cmp_le_u32 s38, 2\n s_cbranch_scc1 {l}')
        e(f'v_swap_b32 v{AC + 16}, v{AC + 19}\n v_swap_b32 v{AC + 17}, v{AC + 18}\n {l}:')
    swap4()
    setup_c(e)
    e.take(w1l)
    e.stamp(9)
    e('s_cmp_lg_u32 s20, 0\n s_cbranch_scc1 LB_nopoll')
    keep = list(e.vm)
    e.spin(vT0, vBar, 16, '0xffff')
    e('LB_nopoll:\n s_barrier')
    e.vm = keep
    e.stamp(10)
    for va, src, dst in [(vV0, 0, 0), (vV1, 40960, 4096), (vV1, 45056, 8192), (vV1, 81920, 12288), (vV1, 86016, 16384)]:
        e(f's_add_u32 s3, s40, {src}\n s_add_u32 m0, s41, {dst}')
        e(f'buffer_load_dwordx4 v{va}, s[8:11], s3 offen {LD} lds', tag='V')
    for k, (va, src) in enumerate([(vV1, 122880), (vV1, 126976), (vV4, 163840)]):
        e(f's_add_u32 s3, s40, {src}\n buffer_load_dwordx4 {vr(XR + 4 * k, 4)}, v{va}, s[8:11], s3 offen {LD}', tag='V2')
    pend = left
    assert CFG['q1'] + CFG['q2'] <= len(left)
    def take(k):
        while k > 0 and pend:
            if pend[0][0] == 'PRE2':
                pend.pop(0); e.confirm(vPk2, vPre2, 's47', 'pk2')
            else:
                e.take(pend, 1); k -= 1
    take(CFG['q1'])
    e.wait(vm='V')
    e('s_barrier')
    e.stamp(11)
    e.stamp(1, 'F')
    seq = [(b, ks) for b in (0, 1, 7, 2, 6, 3, 5, 4) for ks in range(4)]
    NB = 7
    def rd(n):
        b, ks = seq[n]
        f = FB + 4 * (n % 8)
        for u in range(2):
            if b in (0, 4):
                e(f'ds_read_b64_tr_b16 {vr(f + 2 * u, 2)}, v{a0 if b == 0 else a4} offset:{1024 * ks + 256 * u}', tag=f'f{n}')
            else:
                c = b if b < 4 else 8 - b
                e(f'ds_read_b64_tr_b16 {vr(f + 2 * u, 2)}, v{aD if b < 4 else aM} offset:{(12288 if c == 2 else 4096) + 2048 * ks + 512 * u}', tag=f'f{n}')
    for n in range(NB):
        rd(n)
    nxt = NB
    for n, (b, ks) in enumerate(seq):
        if n in (1, 12, 15, 20):
            e.stamp({1: 2, 12: 3, 15: 4, 20: 5}[n], 'F')
        if n == 12:
            e.wait(vm='V2')
            e('s_barrier')
            for k, o in enumerate((4096, 8192, 0)):
                e(f'ds_write_b128 v{vMk}, {vr(XR + 4 * k, 4)} offset:{o}', tag='vw')
        if n == 15:
            e.wait(lg='vw')
            e('s_barrier')
        e.wait(lg=f'f{n}')
        w = W if b < 4 else (W4 if b == 4 else WM)
        e(f'{MF} {vr(AC + 4 * b, 4)}, {vr(FB + 4 * (n % 8), 4)}, {vr(w + 4 * ks, 4)}, {vr(AC + 4 * b, 4)}')
        while nxt <= n + NB and nxt < len(seq) and (nxt < 20 or n >= 15):
            rd(nxt); nxt += 1
        if n % 3 == 1 and n // 3 < CFG['q2']:
            take(1)
        if n == CFG['pk2at']:
            e.peek(vPk2, vPre2, 'pk2')
    while any(t == 'w1' for x, t in pend):
        take(1)
    e.stamp(6, 'F')
    e(f'v_mov_b32 v{tmp}, 0\n v_mov_b32 v{tmp + 1}, 0\n v_mov_b32 v{tmp + 2}, 0\n v_mov_b32 v{tmp + 3}, 0\n s_nop 3')
    swap4()
    for r in range(4):
        for k in range(4):
            lo = AC + 8 * k + (r if 2 * k <= 4 else 3 - r)
            hi = AC + 8 * k + 4 + (r if 2 * k + 1 <= 4 else 3 - r)
            e(f'v_cvt_pk_bf16_f32 v{H + 4 * r + k}, v{lo}, v{hi}')
        e(f'buffer_store_dwordx4 {vr(H + 4 * r, 4)}, v{vHo}, s[8:11], s42 offen offset:{256 * r} {ST}', tag='hst')
        for k in range(4 * r, 4 * r + 4):
            s, q = tmp + 2 * (k % 2), tmp + 2 * (k % 2) + 1
            e(f'v_dot2_f32_bf16 v{s}, v{H + k}, s51, v{s}\n v_dot2_f32_bf16 v{q}, v{H + k}, v{H + k}, v{q}')
    e.stamp(7, 'F')
    e(f'''
    v_add_f32 v{tmp}, v{tmp}, v{tmp + 2}
    v_add_f32 v{tmp + 1}, v{tmp + 1}, v{tmp + 3}
    v_permlane32_swap_b32 v{tmp}, v{tmp + 1}
    v_add_f32 v{tmp}, v{tmp}, v{tmp + 1}
    v_mov_b32 v{tmp + 1}, v{tmp}
    v_permlane16_swap_b32 v{tmp}, v{tmp + 1}
    v_add_f32 v{tmp}, v{tmp}, v{tmp + 1}
    v_mov_b32 v{vBar}, s45
    v_cndmask_b32 v{tmp}, v{tmp}, 0, s[34:35]
    ''')
    e(f'buffer_store_dword v{tmp}, v{vSo}, s[8:11], s43 offen {ST}', tag='hst')
    e.stamp(12)
    e.stamp(7, 'E')
    e.stamp(8, 'F')
    e.wait(vm='w1')
    e('s_barrier')
    e.stamp(8, 'E')
    def arrive():
        e.wait(vm='hst')
        e.arrive(vBar, 1)
        e.confirm(vPk2, vPre2, 's47', 'pk2')
    return w2l, arrive

CS = 16
vWp, vWs, vBC, vSt, vSa, vCs = 168, 171, 174, 175, 167, 156
WIN = 61440 - 61440 % W_K
def w1_frag(dst, slot, k, tag):
    b, o = divmod(W_K * k + (32 * slot if slot < 6 else 0), WIN)
    v = (vWp if slot < 6 else vWs) + b
    return [(f'ds_read_b64_tr_b16 {vr(dst + 2 * h, 2)}, v{v} offset:{o + 1792 * h}', tag) for h in range(2)]

def setup_c(e):
    e(f"""
    v_lshrrev_b32 v{vT0}, 5, v{vLane}
    v_bfe_u32 v{vT1}, v{vLane}, 2, 3
    v_lshl_add_u32 v{vT0}, v{vT0}, 4, v{vT1}
    v_mul_u32_u24 v{vT0}, 224, v{vT0}
    v_and_b32 v{vT1}, 3, v{vLane}
    v_lshl_add_u32 v{vT0}, v{vT1}, 3, v{vT0}
    s_lshl_b32 s3, s31, 5
    v_add_u32 v{vWp}, s3, v{vT0}
    v_add_u32 v{vWp + 1}, {WIN}, v{vWp}
    v_add_u32 v{vWp + 2}, {2 * WIN}, v{vWp}
    s_cmp_eq_u32 s31, 0
    s_cselect_b32 s3, 192, 0
    v_add_u32 v{vWs}, s3, v{vT0}
    v_add_u32 v{vWs + 1}, {WIN}, v{vWs}
    v_add_u32 v{vWs + 2}, {2 * WIN}, v{vWs}
    s_lshl_b32 s3, s20, 6
    s_cmp_eq_u32 s20, 3
    s_cselect_b64 vcc, -1, 0
    s_cselect_b32 s0, {OOB}, 0
    v_or_b32 v{vL16x}, s0, v{vL16}
    """)
    for b in range(3):
        e(f'v_add_u32 v{vCs + b}, s3, v{vWp + b}\n v_cndmask_b32 v{vCs + b}, v{vCs + b}, v{vWs + b}, vcc')
    e(f"""
    v_lshlrev_b32 v{vSa}, 6, v{vI}
    v_lshl_add_u32 v{vSa}, v{vG}, 4, v{vSa}
    v_cmp_le_u32 vcc, 48, v{vLane}
    v_cndmask_b32 v{vT0}, 0, v{vOne}, vcc
    v_lshl_or_b32 v{vSa}, v{vT0}, 31, v{vSa}
    s_lshl_b32 s0, s60, 3
    s_lshl_b32 s3, s20, 1
    s_add_u32 s0, s0, s3
    s_lshl_b32 s23, s0, 10
    s_add_u32 s23, s23, {SB}
    s_mul_i32 s21, s0, 20480
    s_add_u32 s21, s21, {HB}
    s_add_u32 s22, s21, 20480
    s_lshr_b32 s3, s0, 1
    s_add_u32 s3, s3, {C_BC}
    s_lshl_b32 s3, s3, 8
    v_mov_b32 v{vBC}, s3
    s_lshr_b32 s1, s61, 2
    s_cmp_lt_u32 s1, 3
    s_cselect_b32 s3, 0, {OOB}
    v_or_b32 v{vSt}, s3, v{vL16}
    s_and_b32 s48, s0, 0xfc
    s_add_u32 s48, s48, s1
    s_lshl_b32 s48, s48, 1
    s_add_u32 s48, s48, {C_CD}
    s_lshl_b32 s48, s48, 8
    s_mul_i32 s1, s1, 14
    s_mul_i32 s0, s0, 56
    s_add_u32 s0, s0, s1
    s_lshl_b32 s0, s0, 10
    s_add_u32 s0, s0, {H1B}
    s_and_b32 s1, s61, 3
    s_lshl_b32 s12, s1, 11
    s_add_u32 s12, s12, s0
    s_add_u32 s13, s12, 1024
    s_add_u32 s14, s1, 10
    s_lshl_b32 s14, s14, 10
    s_add_u32 s14, s14, s0
    s_lshr_b32 s15, s1, 1
    s_add_u32 s15, s15, 8
    s_lshl_b32 s15, s15, 10
    s_add_u32 s15, s15, s0
    s_lshl_b32 s3, s31, 3
    s_add_u32 s15, s15, s3
    """)

def colsums(e, pend, arrive):
    ONES, AC, FB = 44, 48, 56
    e.stamp(9, 'E')
    for k in range(4):
        e(f'v_mov_b32 v{ONES + k}, s51')
    def rd(k):
        b, o = divmod(W_K * k, WIN)
        for u in range(2):
            for h in range(2):
                e(f'ds_read_b64_tr_b16 {vr(FB + 8 * (k % 4) + 4 * u + 2 * h, 2)}, v{vCs + b} offset:{o + 32 * u + 1792 * h}', tag=f'c{k}')
    for k in range(3):
        rd(k)
    for k in range(20):
        if k == CFG['bat']:
            e.stamp(10, 'E')
            if arrive:
                arrive()
            e.stamp(11, 'E')
            e.take(pend, CFG['q3'])
        e.wait(lg=f'c{k}')
        for u in range(2):
            e(f'{MF} {vr(AC + 4 * u, 4)}, {vr(FB + 8 * (k % 4) + 4 * u, 4)}, {vr(ONES, 4)}, {vr(AC + 4 * u, 4) if k else 0}')
        if k + 3 < 20:
            rd(k + 3)
        if k > CFG['bat'] and k % 2 == 0:
            e.take(pend, CFG['q5'])
    e(f's_lshl_b32 s3, s20, 11\n s_add_u32 s3, s3, {R_CS}\n v_add_u32 v{vT0}, s3, v{vL16}')
    e(f'ds_write_b128 v{vT0}, {vr(AC, 4)}\n ds_write_b128 v{vT0}, {vr(AC + 4, 4)} offset:1024')
    e(f'v_add_u32 v{vT0}, {R_CS}, v{vL16}\n s_waitcnt lgkmcnt(0)\n s_barrier')
    for a in range(7):
        e(f'ds_read_b128 {vr(CS + 4 * a, 4)}, v{vT0} offset:{1024 * a}')
    e.take(pend, CFG['q6'])
    e('s_waitcnt lgkmcnt(0)')

def pair_reduce(a, b):
    return f"""
    v_permlane32_swap_b32 v{a}, v{b}
    v_add_f32 v{a}, v{a}, v{b}
    v_mov_b32 v{b}, v{a}
    v_permlane16_swap_b32 v{a}, v{b}
    v_add_f32 v{a}, v{a}, v{b}
    v_mov_b32 v{b}, v{a}
    v_permlane32_swap_b32 v{a}, v{b}
    """

def phase_c(e, pend):
    vM = 12
    AC, FB, ST0, PK = 44, 100, 132, 140
    NF = 8
    acc = lambda a, rt: AC + 8 * a + 4 * rt
    def rd(seq, n):
        k, a = seq[n]
        return w1_frag(FB + 4 * ((n + (off2 if seq is seq2 else 0)) % NF), a, k, f'w{n}')
    p1, p2 = ((0, 1, 2, 3, 6), (4, 5)) if CFG['split'] == 5 else ((0, 1, 2, 3), (4, 5, 6))
    seq1 = [(k, a) for k in range(20) for a in p1]
    seq2 = [(k, a) for k in range(20) for a in p2]
    off2 = len(seq1) % NF
    for n in range(NF - 1):
        e.take(rd(seq1, n))
    e.stamp(13)
    e.spin(vT1, vBC, 10, 1)
    e.stamp(14)
    for rt in range(2):
        e(f'buffer_load_dwordx4 {vr(ST0 + 4 * rt, 4)}, v{vSa}, s[8:11], s23 offen offset:{1024 * rt} {LD}', tag='st')
    hl = []
    for k in range(20):
        for rt in range(2):
            t = f'buffer_load_dwordx4 {vr(8 * k + 4 * rt, 4, "a")}, v{vOob if CFG["skiph"] else vL16}, s[8:11], s{21 + rt} offen offset:{1024 * (k % 4)} {LD}'
            if k % 4 == 3:
                t += f'\n s_add_u32 s{21 + rt}, s{21 + rt}, 4096'
            hl.append((t, f'h{k}'))
    first = [hl.pop(0) for _ in range(CFG['h0'])]
    e.take(first, 3)
    Mix(e, first, 10)(setup_d())
    e.take(first)
    e.wait(vm='st')
    e(f'v_add_f32 v{vM}, v{ST0}, v{ST0 + 2}\n v_add_f32 v{vM + 1}, v{ST0 + 4}, v{ST0 + 6}')
    e(pair_reduce(vM, vM + 1))
    e(f"""
    v_mul_f32 v{vM}, {flit(-1 / 640)}, v{vM}
    v_mul_f32 v{vM + 1}, {flit(-1 / 640)}, v{vM + 1}
    v_cvt_pk_bf16_f32 v{vM + 1}, v{vM}, v{vM + 1}
    v_lshlrev_b32 v{vM}, 16, v{vM + 1}
    v_and_b32 v{vM + 1}, 0xffff0000, v{vM + 1}
    """)
    init = lambda a: [(f'v_pk_mul_f32 {vr(acc(a, rt) + 2 * k, 2)}, {vr(CS + 4 * a + 2 * k, 2)}, {vr(vM, 2)} op_sel:[0,{rt}] op_sel_hi:[1,{rt}]', None)
                      for rt in range(2) for k in range(2)]
    for a in p1:
        e.take(init(a))
    later = [t for a in p2 for t in init(a)]
    npk = [0]
    def epi(slots, rt, so, tag):
        out = []
        p = PK + 4 * (npk[0] % 4); npk[0] += 1
        for n, a in enumerate(slots):
            for k in range(2):
                out.append((f'v_cvt_pk_bf16_f32 v{p + 2 * n + k}, v{acc(a, rt) + 2 * k}, v{acc(a, rt) + 2 * k + 1}', None))
        out += [(f'v_pk_max_i16 v{p + k}, v{p + k}, 0', None) for k in range(2 * len(slots))]
        t = f's_add_u32 {so}, {so}, {56 * 1024}\n' if rt else ''
        out.append((t + (f'buffer_store_dwordx4 {vr(p, 4)}, v{vL16}, s[8:11], {so} offen {ST}' if len(slots) == 2 else
                         f'buffer_store_dwordx2 {vr(p, 2)}, v{vSt}, s[8:11], {so} offen {ST}'), tag))
        return out
    def gemm(seq, nxt, hook):
        for n, (k, a) in enumerate(seq):
            e.wait(vm=f'h{k}', lg=f'w{n}')
            m = n + NF - 1
            reads = rd(seq, m) if m < len(seq) else (rd(nxt, m - len(seq)) if nxt else [])
            for rt in range(2):
                d = vr(acc(a, rt), 4)
                e(f'{MF} {d}, {vr(FB + 4 * ((n + (off2 if seq is seq2 else 0)) % NF), 4)}, {vr(8 * k + 4 * rt, 4, "a")}, {d}')
                e.take(reads, 1)
                hook(n, k, rt)
    def hook1(n, k, rt):
        if rt == 1:
            due = (n + 1) * 2 // len(p1) - n * 2 // len(p1)
            e.take(hl if due else later, 1)
    gemm(seq1, seq2, hook1)
    assert not hl and not later
    e.stamp(15)
    fill = []
    for (slots, so) in (((0, 1), 's12'), ((2, 3), 's13')) + ((((6,), 's15'),) if 6 in p1 else ()):
        for rt in range(2):
            fill += epi(slots, rt, so, 'u1')
    free_after = {8: 8, 9: 10, 10: 13, 11: 15, 12: 18, 13: 99}
    def hook2(n, k, rt):
        if fill:
            if n >= 2:
                e.take(fill, CFG['cfill'])
        elif rt == 1 and pend and n % CFG['c2'] == 0:
            if k > free_after.get(int(pend[0][1][3:]), -1):
                e.take(pend, 1)
        if n == CFG['u1at'] and rt == 1:
            e.wait(vm='u1')
            e(f'v_mov_b32 v{vT0}, s48')
            e.arrive(vT0, 1)
    gemm(seq2, None, hook2)
    for so, slots in (('s14', (4, 5)),) + ((('s15', (6,)),) if 6 in p2 else ()):
        for rt in range(2):
            e.take(epi(slots, rt, so, 'u2'))
    e.stamp(16)

vDm, vDh, vOo, vOo2, vDw, vRd, vC1, vPk = 156, 157, 14, 15, 158, 161, 162, 163
def setup_d():
    t = d_role('s31', 's30') + f"""
    s_lshl_b32 s33, s60, 3
    s_lshl_b32 s34, s30, 2
    s_add_u32 s33, s33, s34
    s_add_u32 s38, s33, s20
    s_lshl_b32 s3, s38, 1
    s_add_u32 s3, s3, {C_CD}
    s_lshl_b32 s3, s3, 8
    v_mov_b32 v{vC1}, s3
    s_mul_i32 s39, s20, 14
    """
    for r in range(4):
        t += f"""
        s_add_u32 s3, s20, {r + 1}
        s_and_b32 s3, s3, 3
        s_mul_i32 s40, s3, 15360
        s_add_u32 s3, s3, s33
        s_mul_i32 s3, s3, 56
        s_add_u32 s3, s3, s39
        s_lshl_b32 s3, s3, 10
        s_add_u32 s{34 + r}, s3, {H1B}
        v_add_u32 v{vDw + r}, s40, v{vL16}
        """
    t += f"""
    v_lshlrev_b32 v{vDh}, 4, v{vI}
    v_lshl_add_u32 v{vDm}, v{vG}, 8, v{vDh}
    v_lshrrev_b32 v{vT0}, 5, v{vLane}
    v_lshl_add_u32 v{vDh}, v{vT0}, 8, v{vDh}
    v_and_b32 v{vT0}, 1, v{vG}
    v_lshl_add_u32 v{vDh}, v{vT0}, 3, v{vDh}
    s_lshl_b32 s41, s38, 10
    s_add_u32 s41, s41, {SB}
    s_mul_i32 s40, s38, 20480
    s_mul_i32 s3, s31, 2560
    s_add_u32 s40, s40, s3
    s_add_u32 s40, s40, {HB}
    s_sub_u32 s3, 32, s60
    s_cmp_eq_u32 s60, 0
    s_cselect_b32 s3, 16, s3
    s_cmp_eq_u32 s30, 0
    s_cselect_b32 s39, s60, s3
    v_lshl_add_u32 v{vOo}, s20, 4, v{vI}
    v_lshl_add_u32 v{vOo}, v{vOo}, 5, s39
    v_mul_u32_u24 v{vOo}, 1280, v{vOo}
    v_lshl_add_u32 v{vOo2}, v{vG}, 3, v{vOo}
    v_lshl_add_u32 v{vOo}, v{vG}, 4, v{vOo}
    s_mul_i32 s39, s31, 160
    """
    return t

def h1_load(n, rt):
    return (f's_add_u32 s3, s{34 + rt}, {4096 * (n // 4)}\n' +
            f'buffer_load_dwordx4 {ringreg(n, rt)}, v{vOob if CFG["skiph1"] else vL16x if n in (8, 9) else vL16}, s[8:11], s3 offen offset:{1024 * (n % 4)} {LD}',
            f'r{n}_{rt}' if n >= 10 else f'r{n}')

def phase_d(e, pend):
    vM, vR, vW = 11, 12, vDw
    AC, ST0, HR, HF, PB = 16, 104, 108, 176, 196
    misc = [(f'buffer_load_dwordx4 {vr(ST0, 4)}, v{vSa}, s[8:11], s41 offen {LD}', 'st'),
            (f'buffer_load_dwordx4 {vr(HR, 4)}, v{vDm}, s[8:11], s40 offen {LD}', 'st'),
            (f'buffer_load_dwordx4 {vr(HR + 4, 4)}, v{vDm}, s[8:11], s40 offen offset:1024 {LD}', 'st'),
            (f'buffer_load_dwordx2 {vr(HR + 8, 2)}, v{vDh}, s[8:11], s40 offen offset:2048 {LD}', 'st')]
    e(f's_add_u32 s48, s48, 256\n v_mov_b32 v{vT0}, s48')
    e.take(pend, CFG['d0'])
    e.wait(vm='u2')
    e.arrive(vT0, 1)
    e.take(pend, CFG['d1'])
    e.spin(vPk, vC1, 8, 1)
    e.stamp(17)
    stream = [h1_load(n, rt) for n in range(10) for rt in range(4)] + [h1_load(n, rt) for rt in range(4) for n in range(10, 14)]
    e.take(stream, 12)
    e(f'v_add_u32 v{vC1}, 256, v{vC1}')
    extra = pend + misc
    per = -(-len(extra) // 8)
    while extra and extra[0][1].startswith('w2_') and int(extra[0][1][3:]) < 2:
        e.take(extra, 1)
    dacc = lambda rt, a: vr(AC + 20 * rt + 4 * a, 4)
    for n in range(10):
        p2 = 7 if CFG['split'] == 5 else 5
        if n == p2 - 1:
            e.peek(vPk, vC1, 'pk')
        if n == p2:
            e.confirm(vPk, vC1, 8, 'pk')
        if n == 8:
            e('s_barrier')
        fill = [stream.pop(0) for _ in range(4)] + [extra.pop(0) for _ in range(min(per, len(extra)))]
        assert not any(t == f'w2_{n}' for _, t in fill + extra)
        e.wait(vm=(f'w2_{n}', f'r{n}'))
        step = max(1, 20 // len(fill))
        for rt in range(4):
            for a in range(5):
                e(f'{MF} {dacc(rt, a)}, {w2reg(n, a)}, {ringreg(n, rt)}, {dacc(rt, a) if n else 0}')
                if (5 * rt + a) % step == 0:
                    e.take(fill, 1)
        e.take(fill)
    assert not extra
    e.stamp(9, 'D')
    prep = [('WAITST', None), (f'v_add_f32 v{vM}, v{ST0}, v{ST0 + 2}', None), (f'v_add_f32 v{vR}, v{ST0 + 1}, v{ST0 + 3}', None)]
    prep += [(l.strip(), None) for l in (pair_reduce(vM, vR) + f"""
    v_mul_f32 v{vM}, {flit(1 / 640)}, v{vM}
    v_mul_f32 v{vR}, {flit(1 / 640)}, v{vR}
    v_fma_f32 v{vR}, -v{vM}, v{vM}, v{vR}
    v_max_f32 v{vR}, 0, v{vR}
    v_add_f32 v{vR}, {flit(1e-5)}, v{vR}
    v_rsq_f32 v{vR}, v{vR}
    """).split('\n') if l.strip()]
    for k in range(10):
        prep += [(f'v_lshlrev_b32 v{HF + 2 * k}, 16, v{HR + k}', None), (f'v_and_b32 v{HF + 2 * k + 1}, 0xffff0000, v{HR + k}', None)]
    writes = []
    for rt in range(4):
        for n in range(10, 14):
            e.wait(vm=(f'w2_{n}', f'r{n}_{rt}'))
            for a in range(5):
                e(f'{MF} {dacc(rt, a)}, {w2reg(n, a)}, {ringreg(n, rt)}, {dacc(rt, a)}')
                if stream and a == 0:
                    e.take(stream, 1)
                elif writes and n > 10 and a % 2 == 0:
                    e.take(writes, 1)
                elif prep and rt > 0:
                    if prep[0][0] == 'WAITST':
                        prep.pop(0); e.wait(vm='st')
                    e.take(prep, 1)
        e.take(writes)
        if rt < 3:
            writes = [(f'ds_write_b128 v{vW + rt}, {dacc(rt, a)} offset:{5120 * rt + 1024 * a}', None) for a in range(5)]
    e.take(prep)
    e('s_waitcnt lgkmcnt(0)\n s_barrier')
    e.stamp(10, 'D')
    for a in range(5):
        for r in range(3):
            e(f'ds_read_b128 {vr(PB + 12 * a + 4 * r, 4)}, v{vRd} offset:{5120 * r + 1024 * a}', tag=f'q{a}')
    for a in range(5):
        e.wait(lg=f'q{a}')
        o, q = AC + 60 + 4 * a, PB + 12 * a
        for k in (0, 2):
            e(f'v_pk_add_f32 {vr(o + k, 2)}, {vr(o + k, 2)}, {vr(q + k, 2)}\n v_pk_add_f32 {vr(q + 4 + k, 2)}, {vr(q + 4 + k, 2)}, {vr(q + 8 + k, 2)}')
        for k in (0, 2):
            e(f'v_pk_add_f32 {vr(o + k, 2)}, {vr(o + k, 2)}, {vr(q + 4 + k, 2)}')
        for k in (0, 2):
            e(f'v_pk_fma_f32 {vr(o + k, 2)}, {vr(o + k, 2)}, {vr(vR, 2)}, {vr(HF + 4 * a + k, 2)} op_sel_hi:[1,0,1]')
        for k in range(2):
            e(f'v_cvt_pk_bf16_f32 v{HR + 2 * a + k}, v{o + 2 * k}, v{o + 2 * k + 1}')
        if a in (1, 3):
            e(f'buffer_store_dwordx4 {vr(HR + 2 * a - 2, 4)}, v{vOo}, s[16:19], s39 offen offset:{32 * (a - 1)} {CFG["opol"]}')
    e(f'buffer_store_dwordx2 {vr(HR + 8, 2)}, v{vOo2}, s[16:19], s39 offen offset:128 {CFG["opol"]}')
    e.stamp(11, 'D')

def dump_stamps(e, nst):
    if not CFG['stamps']:
        return
    e(f'''
    s_waitcnt vmcnt(0)
    {CFG["clk"]} s[0:1]
    s_lshl_b32 s3, s2, 2
    s_add_u32 s3, s3, s20
    s_lshl_b32 s3, s3, 7
    s_add_u32 s3, s3, {TSB}
    s_waitcnt lgkmcnt(0)
    s_mov_b64 exec, 1
    v_mov_b32 v0, 0
    ''')
    if CFG['dbgwg'] >= 0:
        e(f's_cmp_lg_u32 s2, {CFG["dbgwg"]}\n s_cbranch_scc1 L_done\n s_cmp_lg_u32 s20, 0\n s_cbranch_scc1 L_done')
        for k, n in enumerate([1, 2, 3, 5, 7, 8, 9, 10, 11, 12, 14, 15, 16, 17]):
            e(f's_sub_u32 s3, s{64 + 2 * n}, s64\n v_mov_b32 v1, s3\n buffer_store_dword v1, v0, s[56:59], 0 offen offset:{4 * k + 32}')
        e(f's_sub_u32 s3, s0, s64\n v_mov_b32 v1, s3\n buffer_store_dword v1, v0, s[56:59], 0 offen offset:88')
        return
    for n in range(nst):
        e(f'v_mov_b32 v1, s{64 + 2 * n}\n buffer_store_dword v1, v0, s[8:11], s3 offen offset:{4 * n}')
    e(f'v_mov_b32 v1, s0\n buffer_store_dword v1, v0, s[8:11], s3 offen offset:{4 * nst}')

def build():
    e = K()
    phase_a(e)
    e.vm = ['old']
    w1l = [l for i in range(4) for l in w1_step(i)][CFG['w0']:]
    early = [l for n in range(8) for l in w2_loads(n)]
    late = [l for n in range(8, 14) for l in w2_loads(n)]
    e('s_cmp_ge_u32 s37, 5\n s_cbranch_scc1 LB_idle')
    tot0 = e.total
    pend, arrive = phase_b(e, list(w1l) + w1_step(4), list(early))
    done = len(early) - len(pend)
    rest = list(pend)
    colsums(e, pend, arrive)
    e('s_branch LB_join\n LB_idle:')
    e.vm, e.lg = [], []
    e.total = tot0
    w1l = list(w1l)
    task_finish(e, w1l)
    setup_c(e)
    e.take(w1l)
    e('s_barrier')
    e.take(w1_step(4))
    e.peek(vPk2, vPre2, 'pk2')
    e.confirm(vPk2, vPre2, 's47', 'pk2', slp=CFG['slpi'])
    e.stamp(12)
    e('s_barrier')
    e.take(early[:done])
    colsums(e, rest, None)
    e('LB_join:')
    e.vm = []
    pend += late
    phase_c(e, pend)
    phase_d(e, pend)
    if CFG['padto']:
        e(f'Lpad:\n s_memrealtime s[96:97]\n s_waitcnt lgkmcnt(0)\n s_sub_u32 s96, s96, s98\n s_cmp_lt_u32 s96, {CFG["padto"]}\n s_cbranch_scc1 Lpad')
    dump_stamps(e, 18)
    e('L_done:\n s_endpgm')
    print('instructions', len(e.ins), 'nops', e.nops, file=sys.stderr)
    name = NAME + '_kernel'
    hdr = open('cdna_kernels/' + NAME + '.s.ref').read().split('; Override launch')[0]
    return (hdr + '; @launch grid=(256,1,1) block=(256,1,1) lds=163840\n.amdgcn_target "amdgcn-amd-amdhsa--gfx950"\n.text\n'
            f'.globl {name}\n.p2align 8\n.type {name},@function\n{name}:\n' + e.text() +
            '\n.section .rodata,"a"\n.p2align 6\n' + kd(name, 512, 102, 256))

if __name__ == '__main__':
    for a in sys.argv[2:]:
        k, _, v = a.partition('=')
        assert k in CFG, k
        CFG[k] = (int(v) if v.lstrip('-').isdigit() else v.replace('none', '')) if v else True
    open(sys.argv[1], 'w').write(build())
```

```python
import sys
sys.path.insert(0, 'tools')
from emit import *
from asmlib import *
from model import IDX_LO, IDX_HI

W1B, W2B, VB, HB, SB, H1B = 0x100000, 0x400000, 0x700000, 0xB00000, 0xE00000, 0x1000000
WS_BYTES = 0x1800000
XB = 2048 * 1280
MF = 'v_mfma_f32_16x16x32_bf16'
ST, LD = 'sc1', 'sc1'
C_BAR, C_PRE1, C_PRE2, C_BC, C_CD = 0, 128, 160, 192, 256
OOB = 0x80000000
TSB = 0x40000
SPIN = 100000

CFG = dict(stamps=False, clk='s_memrealtime', dbg='', xpol='', wpol='', cpf=1, slp=2, slpi=20,
           dbgwg=-1, wsoff=0, padto=0, padat=18, pfirst=0, cpfearly=1, bmix=6, cfill=2, w1pol='', rpol='', w1a=6, rot=0, tat=1, touch=1, ta=0, hoist=0, jmap=0, skipw2=0, skipw1=0, nosync=0, skiph1=0, skiph=0, lite=0, tpol='', w0=6, n0=5, xmix=14, pre0=2, pret=0, nopre=0, nov=0, vpol='sc1', ppol='sc1', dst='', p1=36, q1=3, q2=5, q3=8, q4=8, c2=2, u1at=36, w1left=8, q5=1, q6=6, bat=9, opol='sc1', split=4, d1=0, pk2at=20, h0=10, d0=10)

vLane, vG, vI, vL16, vOne, vT0, vT1, vT2, vT3 = 1, 2, 3, 4, 5, 6, 7, 8, 9

class K(Emit):
    nlab = 0
    def lab(self, s):
        K.nlab += 1
        return f'L{s}{K.nlab}'
    def stamp(self, n, grp=''):
        if CFG['padto'] and CFG['padat'] == n and grp == '':
            l = self.lab('pad')
            self(f'{l}:\n s_memrealtime s[96:97]\n s_waitcnt lgkmcnt(0)\n s_sub_u32 s96, s96, s98\n s_cmp_lt_u32 s96, {CFG["padto"]}\n s_cbranch_scc1 {l}')
        if CFG['stamps'] and (n == 0 or not CFG['lite']) and (grp == CFG['dbg'] or (grp == '' and not (CFG['dbg'] and 9 <= n <= 12 and CFG['dbg'] != 'B'))):
            self(f'{CFG["clk"]} s[{64 + 2 * n}:{65 + 2 * n}]')
    def spin(self, v, vaddr, target, mask, srd='s[8:11]', slp=None):
        l, d = self.lab('poll'), self.lab('polld')
        self(f's_mov_b64 exec, {mask}\n s_mov_b32 s63, {0 if CFG["nosync"] else SPIN}\n {l}:')
        self(f'buffer_load_dword v{v}, v{vaddr}, {srd}, 0 offen sc1')
        self(f's_sub_u32 s63, s63, 1\n s_cbranch_scc1 {d}\n s_waitcnt vmcnt(0)')
        self(f'v_cmp_ne_u32 vcc, {target}, v{v}\n s_cbranch_vccz {d}\n s_sleep {CFG["slp"] if slp is None else slp}\n s_branch {l}')
        self(f'{d}:\n s_waitcnt vmcnt(0)\n s_mov_b64 exec, -1')
    def peek(self, v, vaddr, tag, srd='s[8:11]'):
        self(f'buffer_load_dword v{v}, v{vaddr}, {srd}, 0 offen sc1', tag=tag)
    def confirm(self, v, vaddr, target, tag, srd='s[8:11]', slp=None, mask=1):
        l = self.lab('ok')
        self.wait(vm=tag)
        keep, tot = list(self.vm), self.total
        self(f'v_cmp_ne_u32 vcc, {target}, v{v}\n s_cbranch_vccz {l}')
        self.spin(v, vaddr, target, mask, srd, slp)
        self(f'{l}:')
        self.vm, self.total = keep, tot
    def arrive(self, vaddr, mask):
        self(f's_mov_b64 exec, {mask}\n buffer_atomic_add v{vOne}, v{vaddr}, s[8:11], 0 offen sc1\n s_mov_b64 exec, -1')
    def take(self, lst, k=10 ** 6):
        for _ in range(min(k, len(lst))):
            t, tag = lst.pop(0)
            self(t, tag=tag)

def nib(lst):
    return sum(x << (4 * k) for k, x in enumerate(lst))

def round_bf16(e, v, t):
    e(f'v_cvt_pk_bf16_f32 v{t}, v{v}, v{v}\n v_lshlrev_b32 v{v}, 16, v{t}')

class Mix:
    def __init__(self, e, side, period):
        self.e, self.side, self.period, self.n = e, side, period, 0
    def __call__(self, text):
        for line in text.strip().split('\n'):
            if line.strip():
                self.e(line)
                self.n += 1
                if self.n >= self.period and not line.strip().startswith(('s_cmp', 's_cselect')):
                    self.n = 0
                    self.e.take(self.side, 1)

A_MAT, A_G, A_X = 0, 40960, 53248
W_K = 7168
R_BASE = 18 * W_K
R_CS = 20 * W_K
T_STG, X_STG, V_STG = 122880, 147456, 20 * W_K

JMAP = ([0, 3, 4, 7, 5, 6, 1, 2], [8, 11, 12, 13, 14, 15, 9, 10])
vXr = 167
vOob = 159
def roles(e):
    e(f"""
    s_bfe_u32 s60, s2, 0x20001
    s_lshl_b32 s60, s60, 2
    s_bfe_u32 s3, s2, 0x20003
    s_add_u32 s60, s60, s3
    s_bfe_u32 s3, s2, 0x10005
    s_lshl_b32 s50, s22, 1
    s_add_u32 s50, s50, s3
    s_lshr_b32 s37, s50, 1
    s_cmp_eq_u32 s37, 3
    s_cselect_b32 s37, 5, s37
    s_add_u32 s36, s37, 3
    s_lshl_b32 s3, s50, 2
    s_lshr_b32 s61, {nib(JMAP[0] if CFG['jmap'] else range(8))}, s3
    s_lshr_b32 s38, {nib(JMAP[1] if CFG['jmap'] else range(8, 16))}, s3
    s_bitcmp1_b32 s2, 0
    s_cselect_b32 s37, s37, s36
    s_cselect_b32 s61, s38, s61
    s_cselect_b32 s3, 8, 0
    s_and_b32 s61, s61, 15
    s_and_b32 s36, s50, 1
    s_or_b32 s50, s50, s3
    s_sub_u32 s3, 4, s37
    s_cmp_eq_u32 s36, 0
    s_cselect_b32 s38, s37, s3
    """)
    q_of_half(e, 's39', 's36')
    e(d_role('s44', None))
    e(f"""
    s_lshl_b32 s35, s20, 9
    s_add_u32 s35, s35, s39
    s_mul_i32 s35, s35, 1280
    s_lshl_b32 s3, s38, 8
    s_add_u32 s35, s35, s3
    s_lshl_b32 s53, s20, 12
    s_add_u32 s53, s53, {X_STG}
    v_mul_u32_u24 v{vXr}, 40960, v{vG}
    v_xor_b32 v{vT2}, v{vI}, v{vG}
    v_lshl_add_u32 v{vXr}, v{vT2}, 4, v{vXr}
    """)

def w1_setup(e):
    if CFG['skipw1'] or CFG['skipw2'] or CFG['skiph'] or CFG['skiph1']:
        e(f'v_mov_b32 v{vOob}, {OOB}')
    e(f"""
    s_mul_i32 s30, s61, 7
    s_mul_i32 s3, s61, 6
    s_add_u32 s3, s3, 12
    s_cmp_le_u32 s61, 11
    s_cselect_b32 s30, s30, s3
    s_cselect_b32 s47, 14, 12
    s_and_b32 s31, s30, 1
    s_lshl_b32 s32, s30, 5
    s_mul_i32 s3, s20, {32 * 3456}
    s_add_u32 s32, s32, s3
    s_mul_i32 s55, s20, {W_K}
    s_movk_i32 s3, 3456
    """)
    for n in range(7):
        e(f"""
        v_add_u32 v{vT0}, {64 * n}, v{vLane}
        v_mul_u32_u24 v{vT1}, 4682, v{vT0}
        v_lshrrev_b32 v{vT1}, 16, v{vT1}
        v_mad_i32_i24 v{vT0}, v{vT1}, -14, v{vT0}
        v_lshrrev_b32 v{vT2}, 1, v{vT1}
        v_cmp_le_u32 vcc, s47, v{vT0}
        v_xor_b32 v{vT2}, v{vT2}, v{vT1}
        v_and_b32 v{vT2}, 4, v{vT2}
        v_mul_u32_u24 v{vT2}, 3, v{vT2}
        v_xor_b32 v{vT1}, v{vT1}, v{vT2}
        v_lshlrev_b32 v{vT0}, 4, v{vT0}
        v_mad_u32_u24 v{vT0}, v{vT1}, s3, v{vT0}
        v_cndmask_b32 v{vT1}, 0, v{vOne}, vcc
        v_lshl_or_b32 v{vW1 + n}, v{vT1}, 31, v{vT0}
        """)
    e(f"""
    s_mul_i32 s46, s44, 56
    s_mul_i32 s3, s20, 14
    s_add_u32 s46, s46, s3
    s_mul_i32 s46, s46, 5120
    s_add_u32 s46, s46, {W2B}
    s_cmp_eq_u32 s20, 3
    s_cselect_b32 s47, 12, 14
    """)

def d_role(c8, half):
    t = f's_lshr_b32 {c8}, s50, 3\n s_lshl_b32 {c8}, {c8}, 2\n s_and_b32 s3, s50, 3\n s_or_b32 {c8}, {c8}, s3\n'
    return t + (f's_bfe_u32 {half}, s50, 0x10002' if half else '')

def phase_a(e):
    X, F, M0, M1 = 16, 56, 64, 68
    GA, TA, TP, VA, PR = 72, 92, 132, 172, 204
    AF, GR, SM, ONES, PR2 = X, 92, 96, 100, 152
    vXo, vGw, vGr, vSg, vS, vQ = 10, 11, 12, 13, 14, 15
    vS2, vRdy, vP0, vP1, vP4, vPs, vPa, vPb, vPd, vZ = 224, 225, 226, 227, 228, 229, 230, 231, 232, 233
    vD, vD4, vMa, vMb, vHi, vMid = 234, 112, 239, 240, 241, 242
    tmp, vXa, vPv, vPw = 244, VA, 238, 243
    def code_prefetch():
        lp, ln = e.lab('pc'), e.lab('nopf')
        e(f'''
        s_getpc_b64 s[46:47]
        {lp}:
        s_bfe_u32 s3, s2, 0x30003
        v_lshl_add_u32 v{vT0}, v0, 3, s3
        v_lshlrev_b32 v{vT0}, 7, v{vT0}
        v_cmp_gt_u32 vcc, L_done - {lp}, v{vT0}
        s_and_saveexec_b64 s[44:45], vcc
        s_cbranch_execz {ln}
        global_load_dword a255, v{vT0}, s[46:47]
        {ln}:
        s_mov_b64 exec, -1
        ''')
        e.vm.pop()
    e.stamp(0)
    if CFG['padto']:
        e('s_memrealtime s[98:99]')
    e(f'''
    s_load_dwordx2 s[4:5], s[0:1], 0
    s_load_dwordx2 s[8:9], s[0:1], 80
    s_load_dwordx4 s[24:27], s[0:1], 48
    s_load_dwordx4 s[28:31], s[0:1], 64
    s_cmp_ge_u32 s2, 256
    s_cbranch_scc1 L_done
    v_lshrrev_b32 v{vT2}, 6, v0
    v_and_b32 v{vLane}, 63, v0
    v_readfirstlane_b32 s20, v{vT2}
    v_lshrrev_b32 v{vPv}, 3, v{vLane}
    v_and_b32 v{vT1}, 7, v{vLane}
    v_mul_u32_u24 v{vXo}, 81920, v{vPv}
    v_lshlrev_b32 v{vT2}, 1, v{vPv}
    v_and_b32 v{vT2}, 4, v{vT2}
    v_xor_b32 v{vT2}, v{vT2}, v{vT1}
    v_lshl_add_u32 v{vXo}, v{vT2}, 4, v{vXo}
    s_mov_b32 s6, {XB}
    s_mov_b32 s7, 0x20000
    s_and_b32 s21, s2, 63
    s_lshr_b32 s22, s2, 6
    s_xor_b32 s22, s22, 3
    s_mul_i32 s23, s21, 1280
    s_mul_i32 s3, s20, 655360
    s_add_u32 s23, s23, s3
    s_lshl_b32 s52, s20, 10
    s_add_u32 s53, s52, {A_X}
    s_add_u32 s54, s23, 640
    s_add_u32 s55, s53, 20480
    s_bitcmp1_b32 s22, 0
    s_cselect_b32 s62, s54, s23
    s_cselect_b32 s63, s55, s53
    s_cselect_b32 s23, s23, s54
    s_cselect_b32 s53, s53, s55
    ''')
    if CFG['cpf'] and CFG['cpfearly']:
        code_prefetch()
    e(f'''
    s_mov_b32 s10, {WS_BYTES}
    s_mov_b32 s11, 0x20000
    v_mov_b32 v{vZ}, 0
    s_lshl_b32 s3, s20, 3
    s_or_b32 s50, s3, s2
    s_cmp_ge_u32 s50, 8
    s_waitcnt lgkmcnt(0)
    {'s_cselect_b32 s3, 1, 0' if CFG['wsoff'] else ''}
    {'s_add_u32 s8, s8, %d' % (CFG['wsoff'] << 20) if CFG['wsoff'] else ''}
    {'s_addc_u32 s9, s9, 0' if CFG['wsoff'] else ''}
    {'s_cmp_lg_u32 s3, 0' if CFG['wsoff'] else ''}
    s_cbranch_scc1 LA_nozero
    v_lshlrev_b32 v{vT2}, 8, v{vLane}
    s_lshl_b32 s3, s2, 14
    buffer_store_dword v{vZ}, v{vT2}, s[8:11], s3 offen sc1
    LA_nozero:
    ''', tag='zero')
    for so, mo in (('s62', 's63'), ('s23', 's53')):
        for n in range(5):
            e(f's_add_u32 m0, {mo}, {3968 * n}\n buffer_load_dwordx4 v{vXo}, s[4:7], {so} offen offset:{128 * n} {CFG["xpol"]} lds', tag='x')
    e.stamp(1)
    mx = Mix(e, [], 1000)
    e(f'''
    s_mov_b32 s12, s26
    s_mov_b32 s13, s27
    s_mov_b32 s14, {640 * 3456}
    s_mov_b32 s15, 0x20000
    s_mov_b32 s26, {640 * 3456}
    s_mov_b32 s27, 0x20000
    s_mov_b32 s16, s28
    s_mov_b32 s17, s29
    s_mov_b32 s18, {XB}
    s_mov_b32 s19, 0x20000
    v_and_b32 v{vT0}, 1, v{vLane}
    v_lshrrev_b32 v{vG}, 4, v{vLane}
    v_and_b32 v{vI}, 15, v{vLane}
    v_lshlrev_b32 v{vL16}, 4, v{vLane}
    v_mov_b32 v{vOne}, 1
    ''')
    mx(f'''
    v_lshrrev_b32 v{vHi}, 3, v{vI}
    s_add_u32 s41, s22, 1
    s_cmp_lt_u32 s22, 3
    s_cselect_b32 s41, s41, 0
    s_cselect_b32 s42, 0, 4
    s_cselect_b32 s43, 2, 0
    v_mul_u32_u24 v{vT1}, s42, v{vHi}
    v_add_u32 v{vT1}, s41, v{vT1}
    v_mul_u32_u24 v{vT2}, s43, v{vHi}
    v_mad_u32_u24 v{vT2}, v{vT1}, v{vG}, v{vT2}
    v_cvt_f32_u32 v{vT2}, v{vT2}
    v_mul_f32 v{vT2}, {flit(0.125)}, v{vT2}
    v_cos_f32 v{vT2}, v{vT2}
    v_and_b32 v{vT1}, 1, v{vT1}
    v_lshlrev_b32 v{vT1}, 15, v{vT1}
    v_cvt_pk_bf16_f32 v{tmp}, v{vT2}, 0
    v_mov_b32 v{tmp + 1}, 0
    v_xor_b32 v{tmp + 2}, v{vT1}, v{tmp}
    v_mov_b32 v{tmp + 3}, 0
    v_and_b32 v{vT1}, 3, v{vLane}
    v_lshlrev_b32 v{vT2}, 4, v{vT1}
    v_bfe_u32 v{vMid}, v{vI}, 2, 1
    v_lshlrev_b64 {vr(tmp, 2)}, v{vT2}, {vr(tmp, 2)}
    v_lshlrev_b64 {vr(tmp + 2, 2)}, v{vT2}, {vr(tmp + 2, 2)}
    v_cmp_eq_u32 vcc, 0, v{vMid}
    v_lshlrev_b32 v{vSg}, 31, v{vT0}
    v_lshrrev_b32 v{vT2}, 16, v{vSg}
    ''')
    for h in range(2):
        for k in range(2):
            mx(f'v_cndmask_b32 v{F + 4 * h + k}, 0, v{tmp + 2 * h + k}, vcc\n v_cndmask_b32 v{F + 4 * h + 2 + k}, v{tmp + 2 * h + k}, v{vZ}, vcc')
    mx(f'''
    v_or_b32 v{vSg}, v{vSg}, v{vT2}
    v_bfe_u32 v{vT1}, v{vI}, 1, 1
    v_lshrrev_b32 v{vT2}, 2, v{vI}
    v_lshl_add_u32 v{vT2}, s20, 2, v{vT2}
    v_mul_u32_u24 v{vPs}, 204800, v{vT2}
    v_lshl_add_u32 v{vPs}, v{vT1}, 6, v{vPs}
    v_lshl_add_u32 v{vPs}, v{vT0}, 5, v{vPs}
    v_sub_u32 v{vT3}, 32, v{vT2}
    v_cmp_eq_u32 vcc, 0, v{vT2}
    v_and_b32 v{tmp}, 1, v{vG}
    v_lshrrev_b32 v{tmp + 1}, 1, v{vG}
    v_cndmask_b32 v{vT3}, v{vT3}, 16, vcc
    v_cmp_eq_u32 vcc, 0, v{vT1}
    v_lshl_add_u32 v{vP4}, v{tmp}, 4, v{vPs}
    v_xor_b32 v{vT1}, v{vT1}, v{tmp + 1}
    v_cndmask_b32 v{vT2}, v{vT3}, v{vT2}, vcc
    v_lshl_add_u32 v{vP0}, v{vT1}, 15, v{vP4}
    v_lshl_add_u32 v{vP1}, v{vT1}, 14, v{vP4}
    v_lshl_add_u32 v{vP4}, v{tmp + 1}, 13, v{vP4}
    v_lshl_add_u32 v{vPs}, v{vG}, 3, v{vPs}
    v_lshlrev_b32 v{vGw}, 3, v{tmp}
    v_mad_u32_u24 v{vGw}, v{tmp + 1}, s54, v{vGw}
    v_lshlrev_b32 v{vS2}, 31, v{vT2}
    v_cvt_f32_u32 v{vT2}, v{vT2}
    v_mul_f32 v{vT2}, {flit(1 / 32)}, v{vT2}
    v_cvt_f32_u32 v{vT1}, v{vT0}
    v_fmaak_f32 v{vT1}, {flit(0.25)}, v{vT1}, {flit(0.25)}
    v_lshlrev_b32 v{vT3}, 2, v{vG}
    v_cvt_f32_u32 v{vD4}, v{vT3}
    v_fma_f32 v{tmp}, v{vT2}, v{vD4}, v{vT1}
    v_add_f32 v{tmp + 1}, v{tmp}, v{vT2}
    v_add_f32 v{tmp + 2}, v{tmp + 1}, v{vT2}
    v_add_f32 v{tmp + 3}, v{tmp + 2}, v{vT2}
    v_lshrrev_b32 v{vT1}, 16, v{vS2}
    v_or_b32 v{vS2}, v{vS2}, v{vT1}
    '''.replace('v_mad_u32_u24 v%d, v%d, s54' % (vGw, tmp + 1), 's_movk_i32 s54, 5120\n v_mad_u32_u24 v%d, v%d, s54' % (vGw, tmp + 1)))
    for rr in range(4):
        mx(f'v_sin_f32 v{tmp + 4 + rr}, v{tmp + rr}\n v_cos_f32 v{tmp + 8 + rr}, v{tmp + rr}')
    for k in range(2):
        mx(f'v_cvt_pk_bf16_f32 v{M0 + k}, v{tmp + 4 + 2 * k}, v{tmp + 5 + 2 * k}')
        mx(f'v_cvt_pk_bf16_f32 v{M1 + k}, -v{tmp + 8 + 2 * k}, -v{tmp + 9 + 2 * k}')
    for k in range(2):
        mx(f'v_xor_b32 v{M0 + 2 + k}, v{vS2}, v{M0 + k}\n v_xor_b32 v{M1 + 2 + k}, v{vS2}, v{M1 + k}')
    mx(f'''
    v_lshl_add_u32 v{vT0}, s20, 4, v{vT3}
    v_cvt_f32_u32 v{vD}, v{vT0}
    v_add_f32 v{vD + 1}, 1.0, v{vD}
    v_add_f32 v{vD + 2}, 2.0, v{vD}
    v_add_f32 v{vD + 3}, 1.0, v{vD + 2}
    v_add_u32 v{vMa}, s52, v{vL16}
    v_and_b32 v{vT0}, 7, v{vLane}
    v_lshl_add_u32 v{vT1}, s20, 3, v{vT0}
    s_movk_i32 s54, 160
    v_mad_u32_u24 v{vGw}, v{vT1}, s54, v{vGw}
    v_lshl_add_u32 v{vGw}, v{vHi}, 4, v{vGw}
    v_lshrrev_b32 v{vT1}, 2, v{vLane}
    v_mul_u32_u24 v{vGr}, 160, v{vT1}
    v_and_b32 v{vT2}, 3, v{vLane}
    v_lshl_add_u32 v{vGr}, v{vT2}, 3, v{vGr}
    v_lshl_add_u32 v{vT1}, v{vT0}, 7, s52
    v_lshlrev_b32 v{vT0}, 5, v{vT0}
    v_and_b32 v{vT0}, 0x40, v{vT0}
    v_mad_u32_u24 v{vT2}, v{vG}, 10, v{vHi}
    s_movk_i32 s54, {A_X >> 5}
    v_lshl_add_u32 v{vT2}, v{vT2}, 4, s54
    s_movk_i32 s54, 0x70
    s_movk_i32 s55, 0xfff
    ''')
    for m in range(5):
        if m:
            mx(f'v_add_u32 v{vT2}, 32, v{vT2}')
        mx(f'''
        v_xor_b32 v{vT3}, v{vT0}, v{vT2}
        v_lshlrev_b32 v{tmp}, 5, v{vT2}
        v_and_or_b32 v{vT3}, v{vT3}, s54, v{vT1}
        v_bfi_b32 v{vXa + m}, s55, v{vT3}, v{tmp}
        ''')
    e('s_mov_b32 s56, s30\n s_mov_b32 s57, s31\n s_mov_b32 s58, 256\n s_mov_b32 s59, 0x20000\n s_mov_b32 s51, 0x3f803f80')
    e.stamp(9, 'A')
    def body(sig3):
        tl = [(0, 0, 64, 8), (0, 4, 64, 8), (0, 16, 32, 8), (0, 20, 32, 8), (0, 32, 8, 4)]
        tl += [(4, 0, 16, 8), (4, 4, 16, 8), (4, 32, 8, 4)] if sig3 else []
        def touch_chip():
            e(f'''
            s_lshl_b32 s3, s2, 2
            s_add_u32 s3, s3, s20
            s_mul_i32 s3, s3, {17 * 128}
            v_lshlrev_b32 v{vT2}, 7, v{vLane}
            s_bfm_b64 exec, 17, 0
            buffer_load_dword a254, v{vT2}, s[24:27], s3 offen {CFG['tpol']}
            s_mov_b64 exec, -1
            ''')
        def task_loads():
            if CFG['touch'] == 1:
                touch_chip()
            if CFG['touch'] >= 2:
                e(f'''
                s_lshr_b32 s3, s2, 3
                s_lshl_b32 s3, s3, 2
                s_add_u32 s3, s3, s20
                s_mul_i32 s3, s3, {5 * 3456}
                s_and_b32 s33, s2, 1
                s_mul_i32 s33, s33, 1792
                s_add_u32 s3, s3, s33
                s_bfm_b64 exec, 56, 0
                buffer_load_dword a254, v{vPv}, s[24:27], s3 offen {CFG['tpol']}
                ''')
                if CFG['touch'] == 3:
                    e(f's_add_u32 s3, s3, {4 * 3456}\n s_bfm_b64 exec, 14, 0\n buffer_load_dword a253, v{vPv}, s[24:27], s3 offen {CFG["tpol"]}')
                e('s_mov_b64 exec, -1')
        def part(fe, d, c0, addr, off):
            for r in range(0, 4, 2):
                e(f'v_pk_mul_f32 {vr(tmp + r, 2)}, {vr(d + r, 2)}, {vr(fe, 2)} op_sel_hi:[1,0]')
            for r in range(4):
                e(f'v_cos_f32 v{tmp + 4 + r}, v{tmp + r}\n v_sin_f32 v{tmp + 8 + r}, v{tmp + r}')
            for k in range(4):
                e(f'v_cvt_pk_bf16_f32 v{c0 + k}, v{tmp + 4 + 2 * k}, v{tmp + 5 + 2 * k}')
            e(f'ds_write_b128 v{addr}, {vr(c0, 4)} offset:{off}')
        def lanepart(dst, dmid, dhi, add):
            e(f'''
            v_and_b32 v{dst}, 3, v{vI}
            v_mad_u32_u24 v{dst}, v{vMid}, {dmid}, v{dst}
            v_mad_u32_u24 v{dst}, v{vHi}, {dhi}, v{dst}
            v_lshl_add_u32 v{dst}, v{dst}, 3, {add}
            v_cvt_f32_u32 v{dst}, v{dst}
            v_mul_f32 v{dst}, {flit(1 / 640)}, v{dst}
            ''')
        def last_step(it):
            sub = [tl[min(4 * it + w, len(tl) - 1)] for w in range(4)]
            pk = lambda f: sum(f(t) << (8 * w) for w, t in enumerate(sub))
            e(f'''
            s_lshl_b32 s3, s20, 3
            s_lshr_b32 s42, {pk(lambda t: t[2])}, s3
            s_and_b32 s42, s42, 255
            s_lshr_b32 s43, {pk(lambda t: t[3])}, s3
            s_and_b32 s43, s43, 255
            s_lshr_b32 s44, {pk(lambda t: (t[0] + 8 * t[1]) // 4)}, s3
            s_and_b32 s44, s44, 255
            s_lshl_b32 s44, s44, 2
            s_add_u32 s44, s44, s41
            s_mul_i32 s45, s20, 5120
            ''')
            lanepart(vT0, 's43', 's42', 's44')
            e(f'v_add_u32 v{vMb}, s45, v{vL16}')
            part(vT0, vD4, TA + 8, vMb, A_MAT + 20480 * it + 4096)
        e(f'v_cvt_f32_u32 v{vD4}, v{vG}\n v_fmaak_f32 v{vD4}, 4.0, v{vD4}, {flit(64.0)}')
        e(f'v_add_f32 v{vD4 + 1}, 1.0, v{vD4}\n v_add_f32 v{vD4 + 2}, 2.0, v{vD4}\n v_add_f32 v{vD4 + 3}, 1.0, v{vD4 + 2}')
        last = None
        for a, (ko, base, dhi, dmid) in enumerate(tl):
            if (dhi, dmid) != last:
                last = (dhi, dmid)
                lanepart(vT1, dmid, dhi, 's41')
            e(f'v_add_f32 v{vT0}, {flit((ko + 8 * base) / 640)}, v{vT1}')
            part(vT0, vD, TA + 4 * (a % 2), vMa, A_MAT + 5120 * a)
            if a == 0 and sig3:
                l = e.lab('rdy')
                keep = list(e.vm)
                e(f's_cmp_ge_u32 s50, 8\n s_cbranch_scc1 {l}')
                e.wait(vm='zero')
                e(f's_lshl_b32 s3, s2, 2\n s_mov_b64 exec, 1\n buffer_store_dword v{vOne}, v{vZ}, s[56:59], s3 offen sc1\n s_mov_b64 exec, -1\n {l}:')
                e.vm = keep
            if a == CFG['ta'] and CFG['touch'] >= 2:
                touch_chip()
            if a == 1:
                last_step(0)
            if a == 3:
                l = e.lab('ls')
                if not sig3:
                    e(f's_cmp_lg_u32 s20, 0\n s_cbranch_scc1 {l}')
                last_step(1)
                e(f'{l}:')
            if a in (0, 4):
                e.stamp(10 + a // 4, 'A')
        if not sig3 and CFG['hoist'] >= 1:
            roles(e)
        if not sig3 and CFG['hoist'] >= 2:
            w1_setup(e)
        if CFG['touch'] >= 2:
            e(f'''
            v_mul_u32_u24 v{vT0}, 4682, v{vLane}
            v_lshrrev_b32 v{vT0}, 16, v{vT0}
            v_mul_u32_u24 v{vPv}, {3456 - 14 * 128}, v{vT0}
            v_lshl_add_u32 v{vPv}, v{vLane}, 7, v{vPv}
            ''')
        e(f'''
        v_sub_u32 v{vT0}, v{vI}, v{vG}
        v_mad_i32_i24 v{vT0}, v{vG}, -3, v{vT0}
        v_cmp_eq_u32 s[0:1], 0, v{vT0}
        v_cmp_eq_u32 s[62:63], 1, v{vT0}
        v_cmp_eq_u32 s[100:101], 2, v{vT0}
        v_cmp_eq_u32 s[28:29], 3, v{vT0}
        s_mov_b32 s48, {flit(1 / 640)}
        ''')
        for k in range(4):
            e(f'v_mov_b32 v{ONES + k}, s51')
        e('s_waitcnt lgkmcnt(0)\n s_barrier')
        e.stamp(2)
        e.wait(vm='x')
        e.stamp(3)
        order = [(m, h) for m in range(5) for h in range(2)]
        xr = lambda m, h: X + 8 * m + 4 * h
        for (m, h) in order:
            e(f'ds_read_b128 {vr(xr(m, h), 4)}, v{vXa + m} offset:{20480 * h}', tag=f'x{m}{h}')
        if CFG['tat'] == 1:
            task_loads()
        mats = [(f'ds_read_b128 {vr(20 * a + 4 * n, 4, "a")}, v{vL16} offset:{A_MAT + 5120 * a + 1024 * n}', f'm{a}')
                for a in range(len(tl)) for n in range(5)]
        for n, (m, h) in enumerate(order):
            x = xr(m, h)
            e.wait(lg=f'x{m}{h}')
            e(f'{MF} {vr(GR, 4)}, {vr(x, 4)}, {vr(x, 4)}, {vr(GR, 4) if n else 0}')
            e.take(mats, 1)
            e(f'{MF} {vr(SM, 4)}, {vr(ONES, 4)}, {vr(x, 4)}, {vr(SM, 4) if n else 0}')
            e.take(mats, 1 if n >= 3 else 0)
        e.stamp(4)
        fold = [(f'{MF} {vr(GA + 4 * m, 4)}, {vr(F + 4 * h, 4)}, {vr(xr(m, h), 4)}, {vr(GA + 4 * m, 4) if h else 0}', None) for h in range(2) for m in range(5)]
        e.take(fold, 3)
        e.take(mats, 8)
        mg = Mix(e, fold, 2)
        mg(f'''
        v_cndmask_b32 v{vQ}, 0, v{GR}, s[0:1]
        v_cndmask_b32 v{vQ}, v{vQ}, v{GR + 1}, s[62:63]
        v_cndmask_b32 v{vQ}, v{vQ}, v{GR + 2}, s[100:101]
        v_cndmask_b32 v{vQ}, v{vQ}, v{GR + 3}, s[28:29]
        v_add_f32_dpp v{vS}, v{SM}, v{SM} row_ror:8 row_mask:0xf bank_mask:0xf
        v_mov_b32 v{vS2}, v{vQ}
        v_mul_f32 v{vS}, {flit(1 / 640)}, v{vS}
        v_permlane32_swap_b32 v{vS2}, v{vQ}
        v_add_f32 v{vQ}, v{vS2}, v{vQ}
        v_mov_b32 v{vS2}, v{vQ}
        v_permlane16_swap_b32 v{vS2}, v{vQ}
        v_add_f32 v{vQ}, v{vS2}, v{vQ}
        v_mul_f32 v{vS2}, v{vS}, v{vS}
        v_add_f32_dpp v{vQ}, v{vQ}, v{vQ} row_ror:8 row_mask:0xf bank_mask:0xf
        v_fma_f32 v{vQ}, v{vQ}, s48, -v{vS2}
        v_max_f32 v{vQ}, 0, v{vQ}
        v_add_f32 v{vQ}, {flit(1e-5)}, v{vQ}
        v_rsq_f32 v{vQ}, v{vQ}
        ''')
        e.take(fold)
        if sig3:
            e(f'v_cmp_gt_u32 vcc, 32, v{vLane}')
            round_bf16(e, vS, vS2)
            e(f'v_mul_f32 v{vS}, {flit(-8.0)}, v{vS}\n v_mul_f32 v{vS}, v{vS}, v{vQ}\n v_cndmask_b32 v{vS}, 0, v{vS}, vcc')
        for m in range(5):
            g = GA + 4 * m
            for k in range(2):
                if sig3:
                    e(f'v_pk_fma_f32 {vr(g + 2 * k, 2)}, {vr(g + 2 * k, 2)}, {vr(vS, 2)}, {vr(vS, 2)} op_sel:[0,1,0] op_sel_hi:[1,1,0]')
                else:
                    e(f'v_pk_mul_f32 {vr(g + 2 * k, 2)}, {vr(g + 2 * k, 2)}, {vr(vS, 2)} op_sel:[0,1] op_sel_hi:[1,1]')
            e(f'v_cvt_pk_bf16_f32 v{g}, v{g}, v{g + 1}\n v_cvt_pk_bf16_f32 v{g + 1}, v{g + 2}, v{g + 3}')
            e(f'ds_write_b64 v{vGw}, {vr(g, 2)} offset:{A_G + 32 * m}', tag='gw')
        e.wait(lg='gw')
        e('s_barrier')
        e.stamp(5)
        for tau in range(5):
            for c in range(2):
                b = AF + 8 * tau + 4 * c
                for u in range(2):
                    e(f'ds_read_b64_tr_b16 {vr(b + 2 * u, 2)}, v{vGr} offset:{A_G + 5120 * c + 2560 * u + 32 * tau}', tag=f'g{tau}{c}')
        if CFG['tat'] == 2:
            task_loads()
        for tau in range(5):
            for c in range(2):
                b = AF + 8 * tau + 4 * c
                e.wait(lg=f'g{tau}{c}')
                if sig3:
                    e(f'{MF} {vr(TA + 20 * c + 4 * tau, 4)}, {vr(b, 4)}, {vr(M0, 4)}, 0')
                else:
                    t = vr(TA + 4 * tau, 4)
                    e(f'{MF} {t}, {vr(b, 4)}, {vr(M1 if c else M0, 4)}, {t if c else 0}')
        e(f's_lshl_b32 s42, s21, 7\n s_add_u32 s42, s42, {VB}\n s_mul_i32 s3, s41, 40960\n s_add_u32 s42, s42, s3')
        def pack(s):
            out = []
            for tau in range(5):
                t = TA + 20 * s + 4 * tau
                o = TP + 20 * s + 4 * tau
                for k in range(2):
                    out.append((f'v_cvt_pk_bf16_f32 v{o + k}, v{t + 2 * k}, v{t + 2 * k + 1}', None))
                if tau:
                    out += xors
                xors = [(f'v_xor_b32_dpp v{o + 2 + k}, v{o + k}, v{vSg} quad_perm:[1,0,3,2] row_mask:0xf bank_mask:0xf', None) for k in range(2)]
            return out + xors
        p0 = pack(0)
        e.take(p0, 6)
        e.stamp(6)
        groups = [((0, 1), 0, vP0, 0), ((2, 3), 0, vP1, 8192), ((4,), 0, vPs, 16384)]
        if sig3:
            groups += [((5, 6), 1, vP4, 4 * 40960), ((7,), 1, vPs, 4 * 40960 + 16384)]
        def finish(g):
            tls, s, va, so = g
            o = VA + 4 * tls[0]
            out = []
            for n, a in enumerate(tls):
                for k in range(2):
                    out.append((f'v_cvt_pk_bf16_f32 v{o + 2 * n + k}, v{VA + 4 * a + 2 * k}, v{VA + 4 * a + 2 * k + 1}', None))
            out.append((f's_add_u32 s43, s42, {so}\n buffer_store_dwordx{2 * len(tls)} {vr(o, 2 * len(tls))}, v{va}, s[8:11], s43 offen {CFG["vpol"]}', 'vst'))
            if CFG['nov']: out.pop()
            return out
        e(f'v_and_b32 v{vZ}, 7, v{vLane}\n v_lshlrev_b32 v{vZ}, 2, v{vZ}\n buffer_load_dword v{vRdy}, v{vZ}, s[56:59], 0 offen sc1', tag='rdy')
        fill = p0 + (pack(1) if sig3 else [])
        for gi, g in enumerate(groups):
            seq = [(a, n) for n in range(5) for a in g[0]]
            for k, (a, n) in enumerate(seq):
                d = vr(VA + 4 * a, 4)
                while any(t == f'm{a}' for _, t in mats):
                    e.take(mats, 1)
                e.wait(lg=f'm{a}')
                e(f'{MF} {d}, {vr(20 * a + 4 * n, 4, "a")}, {vr(TP + 20 * g[1] + 4 * n, 4)}, {d if n else 0}')
                if k == 2 and gi > 0:
                    fill = finish(groups[gi - 1]) + fill
                if gi == 0 and k < 7:
                    e.take(fill, 2)
                elif fill:
                    e.take(fill, 1); e.take(mats, 1)
                else:
                    e.take(mats, 2)
            if gi == 2:
                e.take(fill)
        e.take(fill + finish(groups[-1]))
        e.stamp(7)
        leave_a(e, sig3)
    e('s_cmp_eq_u32 s22, 3\n s_cbranch_scc1 LA_sig3')
    vm0, lg0 = list(e.vm), list(e.lg)
    body(False)
    e('s_branch LA_end\n LA_sig3:')
    e.vm, e.lg = list(vm0), list(lg0)
    body(True)
    e('LA_end:')

W2V, vL16x = 176, 10
def w2reg(n, a):
    if n < 4:
        return vr(160 + 20 * n + 4 * a, 4, 'a')
    if n < 8:
        return vr(W2V + 20 * (n - 4) + 4 * a, 4)
    r = 48 + 20 * (n - 8) + 4 * a
    return vr(r, 4, 'a') if r < 160 else vr(132 + r - 160, 4)
def ringreg(n, rt):
    if n >= 10:
        return vr(160 + 16 * (n - 10) + 4 * rt, 4, 'a')
    s = n % 4
    return vr(240 + 4 * rt, 4, 'a') if s == 0 else vr(16 * (s - 1) + 4 * rt, 4, 'a')
def w2_loads(n):
    return [((f's_add_u32 s62, s46, {5120 * n + 4096 * (a // 4)}\n' if a % 4 == 0 else '') +
             f'buffer_load_dwordx4 {w2reg(n, a)}, v{vOob if CFG["skipw2"] else vL16x if n in (8, 9) else vL16}, s[8:11], s62 offen offset:{1024 * (a % 4)} {LD}', f'w2_{n}') for a in range(5)]

vPre2, vBarA, vPk2, vW1 = 11, 12, 15, 160
def w1_step(i):
    head = (f's_add_u32 s53, s60, {i}\n s_and_b32 s53, s53, 3\n' if i < 4 and CFG['rot'] else f's_mov_b32 s53, {i}\n') + \
        f's_mul_i32 s33, s53, {4 * 32 * 3456}\n s_add_u32 s33, s33, s32\n s_mul_i32 s53, s53, {4 * W_K}\n s_add_u32 s53, s53, s55\n'
    return [((head if n == 0 else '') +
             f's_add_u32 m0, s53, {1024 * n}\n buffer_load_dwordx4 v{vOob if CFG["skipw1"] else vW1 + n}, s[24:27], s33 offen {CFG["w1pol"]} lds', 'w1') for n in range(7)]

def guarded(e, cond, items):
    l = e.lab('opt')
    kv, kl, tot = list(e.vm), list(e.lg), e.total
    e(f'{cond}\n s_cbranch_scc0 {l}')
    for t in items:
        e(t[0] if isinstance(t, tuple) else t)
    e(f'{l}:')
    e.vm, e.lg, e.total = kv, kl, tot

def leave_a(e, sig3):
    vRdy, vZ = 225, 233
    w0 = 0 if sig3 else CFG['w0']
    if sig3 or CFG['hoist'] < 1:
        roles(e)
    if not sig3:
        guarded(e, 's_cmp_lt_u32 s37, 5',
                [f's_add_u32 m0, s53, {1024 * n}\n buffer_load_dwordx4 v{vXr}, s[4:7], s35 offen {CFG["rpol"]} lds\n' +
                 (f's_add_u32 s35, s35, {4 * 40960}\n v_xor_b32 v{vXr}, {64 if n % 2 == 0 else 192}, v{vXr}' if n < 3 else '') for n in range(4)])
    task_start(e, 0)
    if sig3:
        e(f's_mov_b32 s43, {OOB}')
    else:
        task_start(e, 1)
        if CFG['hoist'] < 2:
            w1_setup(e)
        e('s_barrier')
        e.take([l for i in range(4) for l in w1_step(i)], w0)
    e(f"""
    s_bfe_u32 s3, s2, 0x40003
    v_lshl_add_u32 v{vBarA}, v{vLane}, 4, s3
    v_lshlrev_b32 v{vBarA}, 8, v{vBarA}
    s_lshl_b32 s3, s44, 2
    s_add_u32 s3, s3, s20
    s_add_u32 s3, s3, {C_PRE2}
    s_lshl_b32 s3, s3, 8
    v_mov_b32 v{vPre2}, s3
    """)
    e(f's_waitcnt vmcnt({w0 + 5})')
    if not sig3:
        guarded(e, 's_cmp_lt_u32 s37, 5', [f's_waitcnt vmcnt({w0 + 4})'])
    guarded(e, f's_cmp_lt_u32 s37, 5\n s_cselect_b32 s3, 0, s41\n s_cmp_eq_u32 s3, {OOB}', [f's_waitcnt vmcnt({w0})'])
    e.stamp(12, 'A')
    e.vm = []
    e.confirm(vRdy, vZ, 1, 'rdy', 's[56:59]', mask='0xff')
    e('s_barrier')
    guarded(e, 's_cmp_eq_u32 s20, 0', [f's_mov_b64 exec, 0xff\n buffer_atomic_add v{vOne}, v{vBarA}, s[8:11], 0 offen sc1\n s_mov_b64 exec, -1'])
    e.stamp(8)
    if sig3:
        w1_setup(e)
        e.take([l for i in range(4) for l in w1_step(i)], CFG['w0'])

def task_start(e, it):
    inv_lo = [IDX_LO.index(k) for k in range(14)]
    inv_hi = [IDX_HI.index(k) if k in IDX_HI else 15 for k in range(14)]
    l = e.lab('notask')
    kv, tot = list(e.vm), e.total
    d, c = f's{40 + 2 * it}', f's{41 + 2 * it}'
    e(f"""
    s_mov_b32 {c}, {OOB}
    s_lshr_b32 s35, s2, 1
    s_add_u32 s35, s35, {32 + 32 * it}
    s_cmp_lt_u32 s2, 64
    s_cselect_b32 s35, {'s2' if it == 0 else 112}, s35
    s_cmp_lt_u32 s37, 5
    s_cselect_b32 s35, 112, s35
    s_cmp_ge_u32 s35, 112
    s_cbranch_scc1 {l}
    s_bfe_u32 s62, s35, 0x20001
    s_lshr_b32 s63, s35, 3
    s_and_b32 s35, s35, 1
    s_mov_b32 s0, {nib(inv_lo) & 0xffffffff}
    s_mov_b32 s1, {nib(inv_lo) >> 32}
    s_mov_b32 s28, {nib(inv_hi) & 0xffffffff}
    s_mov_b32 s29, {nib(inv_hi) >> 32}
    s_cmp_lt_u32 s62, 3
    s_cselect_b64 s[0:1], s[0:1], s[28:29]
    s_lshl_b32 s3, s63, 2
    s_lshr_b64 s[0:1], s[0:1], s3
    s_and_b32 s0, s0, 15
    s_cmp_eq_u32 s0, 15
    s_cbranch_scc1 {l}
    s_mul_i32 s34, s62, 14
    s_add_u32 s0, s0, s34
    s_lshl_b32 s0, s0, 2
    s_add_u32 s0, s0, s20
    s_mul_i32 s33, s0, {8 * 1280}
    s_mul_i32 s3, s35, 640
    s_add_u32 s33, s33, s3
    s_lshl_b32 s35, s35, 2
    s_add_u32 s35, s35, s20
    s_mul_i32 {d}, s35, 56
    s_add_u32 {d}, {d}, s34
    s_add_u32 {d}, {d}, s63
    s_mul_i32 {d}, {d}, 5120
    s_add_u32 {d}, {d}, {W2B}
    s_lshl_b32 {c}, s35, 2
    s_add_u32 {c}, {c}, s62
    s_add_u32 {c}, {c}, {C_PRE2}
    s_lshl_b32 {c}, {c}, 8
    s_mul_i32 s34, s20, 5120
    s_add_u32 s34, s34, {T_STG + 20480 * it}
    v_lshrrev_b32 v{vT0}, 3, v{vLane}
    v_mul_u32_u24 v{vT0}, 1280, v{vT0}
    v_and_b32 v{vT2}, 7, v{vLane}
    v_lshl_add_u32 v{vT0}, v{vT2}, 4, v{vT0}
    """)
    for n in range(5):
        e(f's_add_u32 m0, s34, {896 * n}\n buffer_load_dwordx4 v{vT0}, s[12:15], s33 offen offset:{128 * n} {CFG["wpol"]} lds')
    e(f'{l}:')
    e.vm, e.total = kv, tot

def task_finish(e, loads):
    vPa, PR = 16, 176
    e(f"""
    v_bfe_u32 v{vT2}, v{vLane}, 2, 3
    v_lshlrev_b32 v{vT2}, 7, v{vT2}
    v_lshrrev_b32 v{vT3}, 5, v{vLane}
    s_movk_i32 s3, 5120
    v_mad_u32_u24 v{vT2}, v{vT3}, s3, v{vT2}
    v_add_u32 v{vT2}, {T_STG}, v{vT2}
    s_mul_i32 s3, s20, 10
    v_and_b32 v{vT3}, 3, v{vLane}
    v_add_u32 v{vPa}, s3, v{vT3}
    v_add_u32 v{vPa + 1}, 4, v{vPa}
    v_bfe_u32 v{vT3}, v{vLane}, 1, 1
    v_add3_u32 v{vPa + 2}, s3, v{vT3}, 8
    """)
    for k in range(3):
        e(f"""
        v_lshrrev_b32 v{vT3}, 3, v{vPa + k}
        v_and_b32 v{vPa + k}, 7, v{vPa + k}
        v_lshl_add_u32 v{vPa + k}, v{vPa + k}, 4, v{vT2}
        v_lshl_add_u32 v{vPa + k}, v{vT3}, 10, v{vPa + k}
        """)
    e(f'v_and_b32 v{vT3}, 1, v{vLane}\n v_lshl_add_u32 v{vPa + 2}, v{vT3}, 3, v{vPa + 2}\n s_waitcnt vmcnt({CFG["w0"]})\n s_barrier')
    e.stamp(9)
    for it in range(2):
        d = f's{40 + 2 * it}'
        items = [f'ds_read_b64_tr_b16 {vr(PR + 4 * a + 2 * v, 2)}, v{vPa + (a >> 1)} offset:{20480 * it + 8 * (a & 1) + 10240 * v}' for a in range(5) for v in range(2)]
        items += ['s_waitcnt lgkmcnt(0)']
        items += [f'buffer_store_dwordx4 {vr(PR + 4 * a, 4)}, v{vL16}, s[8:11], {d} offen offset:{1024 * a} {ST}' for a in range(4)]
        items += [f's_add_u32 {d}, {d}, 4096\n buffer_store_dwordx4 {vr(PR + 16, 4)}, v{vL16}, s[8:11], {d} offen {ST}\n s_nop 1']
        guarded(e, f's_cmp_lg_u32 s{41 + 2 * it}, {OOB}', items)
    e.stamp(10)
    e.take(loads, CFG['w1a'])
    e(f's_waitcnt vmcnt({CFG["w1a"]})\n v_mov_b32 v{vT2}, s41\n v_mov_b32 v{vT3}, s43')
    e.arrive(vT2, 1)
    e.arrive(vT3, 1)
    e.stamp(11)

def w1_finish(e, loads):
    e.take(loads)
    e('s_barrier')
    guarded(e, 's_cmp_lt_u32 s20, 2', w1_step(4))

def q_of_half(e, dst, half):
    e(f'''
    s_sub_u32 s3, 32, s60
    s_cmp_eq_u32 s60, 0
    s_cselect_b32 s3, 16, s3
    s_cmp_eq_u32 {half}, 0
    s_cselect_b32 {dst}, s60, s3
    ''')

def phase_b(e, w1l, w2l):
    aD, aM, a0, a4, vMk, vHo, vSo, vV1, vV0, vV4, vBar, vMk4 = range(16, 28)
    XR, AC, W, WM, W4, FB, tmp, H = 28, 44, 76, 92, 108, 124, 40, 124
    e(f'''
    v_lshlrev_b32 v{vT1}, 2, v{vG}
    v_xor_b32 v{vT1}, v{vT1}, v{vI}
    v_lshlrev_b32 v{vT1}, 4, v{vT1}
    v_lshl_add_u32 v{vT1}, v{vI}, 8, v{vT1}
    s_lshl_b32 s3, s20, 12
    s_add_u32 s3, s3, {X_STG}
    v_add_u32 v{vT1}, s3, v{vT1}
    ''')
    e(f'v_mov_b32 v{vBar}, v{vT1}')
    tot0 = e.total
    e(f'v_lshl_add_u32 v{vT0}, s20, 4, v{vI}\n v_lshl_add_u32 v{vT0}, v{vT0}, 5, s39')
    e(f'''
    v_cvt_f32_u32 v{vT0}, v{vT0}
    v_mul_f32 v{vT0}, {flit(1 / 2048)}, v{vT0}
    v_and_b32 v{vT1}, 1, v{vG}
    v_lshlrev_b32 v{vMk}, 31, v{vT1}
    v_lshrrev_b32 v{vT2}, 16, v{vMk}
    v_or_b32 v{vMk}, v{vMk}, v{vT2}
    v_lshrrev_b32 v{vT2}, 5, v{vLane}
    v_lshlrev_b32 v{vSo}, 6, v{vI}
    v_lshl_add_u32 v{vSo}, v{vT2}, 2, v{vSo}
    v_lshlrev_b32 v{vT2}, 3, v{vT2}
    v_cvt_f32_u32 v{FB}, v{vT2}
    v_bfe_u32 v{vT3}, v{vLane}, 2, 2
    v_add_u32 v{vT2}, v{vT2}, v{vT3}
    v_lshlrev_b32 v{a0}, 5, v{vT1}
    v_add_u32 v{a0}, {V_STG}, v{a0}
    v_lshl_add_u32 v{aD}, v{vT2}, 7, v{a0}
    v_lshl_add_u32 v{a0}, v{vT2}, 6, v{a0}
    v_lshrrev_b32 v{vT3}, 1, v{vT3}
    v_xor_b32 v{vT2}, 1, v{vT3}
    v_lshl_add_u32 v{aM}, v{vT2}, 6, v{aD}
    v_lshl_add_u32 v{aD}, v{vT3}, 6, v{aD}
    v_and_b32 v{vT2}, 3, v{vLane}
    v_xor_b32 v{vT3}, 3, v{vT2}
    v_lshl_add_u32 v{aD}, v{vT2}, 3, v{aD}
    v_lshl_add_u32 v{aM}, v{vT3}, 3, v{aM}
    v_lshl_add_u32 v{a4}, v{vT3}, 3, v{a0}
    v_lshl_add_u32 v{a0}, v{vT2}, 3, v{a0}
    v_cvt_f32_u32 v{vT1}, v{vT1}
    v_sub_f32 v{vT1}, 1.0, v{vT1}
    v_mul_f32 v{vT1}, {flit(0.25)}, v{vT1}
    v_fma_f32 v{vT1}, v{vT0}, v{FB}, v{vT1}
    s_cmp_le_u32 s38, 2
    s_cselect_b32 s3, 0, -1
    s_cselect_b64 s[40:41], -1, 0
    v_and_b32 v{vMk4}, s3, v{vMk}
    v_cndmask_b32 v{a4}, v{a4}, v{a0}, s[40:41]
    ''')
    left = [w1l.pop() for _ in range(CFG['w1left'])][::-1]
    mx = Mix(e, w1l, CFG['bmix'])
    for ks in range(4):
        for n in range(8):
            mx(f'v_fmamk_f32 v{FB + n}, v{vT0}, {flit(16 * ks + n)}, v{vT1}')
        for n in range(8):
            mx(f'v_sin_f32 v{FB + n}, v{FB + n}')
        for k in range(4):
            mx(f'v_cvt_pk_bf16_f32 v{W + 4 * ks + k}, v{FB + 2 * k}, v{FB + 2 * k + 1}')
    for k in range(16):
        mx(f'v_xor_b32 v{WM + k}, v{vMk}, v{W + k}\n v_xor_b32 v{W4 + k}, v{vMk4}, v{W + k}')
    e(f's_waitcnt vmcnt({e.total - tot0 + CFG["w0"]})')
    for r in range(4):
        e((f'v_xor_b32 v{vBar}, {16 if r % 2 else 48}, v{vBar}\n' if r else '') + f'ds_read_b128 {vr(XR + 4 * r, 4)}, v{vBar}', tag='xr')
    e.wait(lg='xr')
    for r in range(4):
        for k in range(8):
            d = AC + 4 * k + (r if k <= 4 else 3 - r)
            x = XR + 4 * r + k // 2
            mx(f'v_lshlrev_b32 v{d}, 16, v{x}' if k % 2 == 0 else f'v_and_b32 v{d}, 0xffff0000, v{x}')
    e(f'''
    s_lshl_b32 s40, s37, 13
    s_lshl_b32 s3, s36, 6
    s_add_u32 s40, s40, s3
    s_xor_b32 s41, s40, 64
    s_sub_u32 s42, 4, s37
    s_lshl_b32 s42, s42, 13
    s_add_u32 s42, s42, s3
    s_xor_b32 s43, s3, 64
    s_cmp_eq_u32 s60, 0
    s_cselect_b32 s41, s42, s41
    s_cselect_b32 s42, s3, s43
    s_sub_u32 s43, 4, s38
    s_cmp_le_u32 s38, 2
    s_cselect_b32 s42, s3, s42
    s_cselect_b32 s43, s38, s43
    s_lshl_b32 s43, s43, 13
    s_add_u32 s42, s42, s43
    v_lshrrev_b32 v{vT0}, 3, v0
    v_and_b32 v{vT1}, 3, v0
    v_lshlrev_b32 v{vT1}, 4, v{vT1}
    v_lshl_add_u32 v{vV1}, v{vT0}, 7, v{vT1}
    v_lshrrev_b32 v{vT2}, 2, v0
    v_lshl_add_u32 v{vV0}, v{vT2}, 7, v{vT1}
    v_lshrrev_b32 v{vT0}, 1, v{vT0}
    v_xor_b32 v{vT0}, v{vT0}, v{vT2}
    v_and_b32 v{vT0}, 1, v{vT0}
    v_cmp_eq_u32 vcc, 0, v{vT0}
    v_mov_b32 v{vT1}, s41
    v_mov_b32 v{vT2}, s40
    v_cndmask_b32 v{vT1}, v{vT1}, v{vT2}, vcc
    v_add_u32 v{vV1}, v{vV1}, v{vT1}
    v_add_u32 v{vV4}, s42, v{vV0}
    v_add_u32 v{vV0}, s40, v{vV0}
    s_mul_i32 s40, s60, 204800
    s_add_u32 s40, s40, {VB}
    s_add_u32 s41, s52, {V_STG}
    v_lshlrev_b32 v{vMk}, 4, v0
    v_add_u32 v{vMk}, {V_STG}, v{vMk}
    s_lshl_b32 s3, s36, 2
    s_lshl_b32 s42, s60, 3
    s_add_u32 s42, s42, s3
    s_add_u32 s42, s42, s20
    s_lshr_b32 s45, s42, 1
    s_add_u32 s45, s45, {C_BC}
    s_lshl_b32 s45, s45, 8
    s_lshl_b32 s43, s42, 7
    s_add_u32 s43, s43, s38
    s_lshl_b32 s43, s43, 3
    s_add_u32 s43, s43, {SB}
    s_cmp_eq_u32 s38, 4
    s_cselect_b32 s34, 0xffff0000, 0
    s_mov_b32 s35, s34
    v_cndmask_b32 v{vT0}, 0, 8, s[34:35]
    v_add_u32 v{vSo}, v{vSo}, v{vT0}
    s_mul_i32 s42, s42, 20480
    s_lshl_b32 s3, s38, 12
    s_add_u32 s42, s42, s3
    s_add_u32 s42, s42, {HB}
    v_lshlrev_b32 v{vHo}, 4, v{vI}
    v_lshl_add_u32 v{vHo}, v{vG}, 10, v{vHo}
    s_and_b32 s3, s2, 7
    s_lshl_b32 s3, s3, 4
    v_add_u32 v{vBar}, s3, v{vLane}
    v_lshlrev_b32 v{vBar}, 8, v{vBar}
    ''')
    def swap4():
        l = e.lab('sw')
        e(f's_cmp_le_u32 s38, 2\n s_cbranch_scc1 {l}')
        e(f'v_swap_b32 v{AC + 16}, v{AC + 19}\n v_swap_b32 v{AC + 17}, v{AC + 18}\n {l}:')
    swap4()
    setup_c(e)
    e.take(w1l)
    e.stamp(9)
    e('s_cmp_lg_u32 s20, 0\n s_cbranch_scc1 LB_nopoll')
    keep = list(e.vm)
    e.spin(vT0, vBar, 16, '0xffff')
    e('LB_nopoll:\n s_barrier')
    e.vm = keep
    e.stamp(10)
    for va, src, dst in [(vV0, 0, 0), (vV1, 40960, 4096), (vV1, 45056, 8192), (vV1, 81920, 12288), (vV1, 86016, 16384)]:
        e(f's_add_u32 s3, s40, {src}\n s_add_u32 m0, s41, {dst}')
        e(f'buffer_load_dwordx4 v{va}, s[8:11], s3 offen {LD} lds', tag='V')
    for k, (va, src) in enumerate([(vV1, 122880), (vV1, 126976), (vV4, 163840)]):
        e(f's_add_u32 s3, s40, {src}\n buffer_load_dwordx4 {vr(XR + 4 * k, 4)}, v{va}, s[8:11], s3 offen {LD}', tag='V2')
    pend = left
    assert CFG['q1'] + CFG['q2'] <= len(left)
    def take(k):
        while k > 0 and pend:
            if pend[0][0] == 'PRE2':
                pend.pop(0); e.confirm(vPk2, vPre2, 's47', 'pk2')
            else:
                e.take(pend, 1); k -= 1
    take(CFG['q1'])
    e.wait(vm='V')
    e('s_barrier')
    e.stamp(11)
    e.stamp(1, 'F')
    seq = [(b, ks) for b in (0, 1, 7, 2, 6, 3, 5, 4) for ks in range(4)]
    NB = 7
    def rd(n):
        b, ks = seq[n]
        f = FB + 4 * (n % 8)
        for u in range(2):
            if b in (0, 4):
                e(f'ds_read_b64_tr_b16 {vr(f + 2 * u, 2)}, v{a0 if b == 0 else a4} offset:{1024 * ks + 256 * u}', tag=f'f{n}')
            else:
                c = b if b < 4 else 8 - b
                e(f'ds_read_b64_tr_b16 {vr(f + 2 * u, 2)}, v{aD if b < 4 else aM} offset:{(12288 if c == 2 else 4096) + 2048 * ks + 512 * u}', tag=f'f{n}')
    for n in range(NB):
        rd(n)
    nxt = NB
    for n, (b, ks) in enumerate(seq):
        if n in (1, 12, 15, 20):
            e.stamp({1: 2, 12: 3, 15: 4, 20: 5}[n], 'F')
        if n == 12:
            e.wait(vm='V2')
            e('s_barrier')
            for k, o in enumerate((4096, 8192, 0)):
                e(f'ds_write_b128 v{vMk}, {vr(XR + 4 * k, 4)} offset:{o}', tag='vw')
        if n == 15:
            e.wait(lg='vw')
            e('s_barrier')
        e.wait(lg=f'f{n}')
        w = W if b < 4 else (W4 if b == 4 else WM)
        e(f'{MF} {vr(AC + 4 * b, 4)}, {vr(FB + 4 * (n % 8), 4)}, {vr(w + 4 * ks, 4)}, {vr(AC + 4 * b, 4)}')
        while nxt <= n + NB and nxt < len(seq) and (nxt < 20 or n >= 15):
            rd(nxt); nxt += 1
        if n % 3 == 1 and n // 3 < CFG['q2']:
            take(1)
        if n == CFG['pk2at']:
            e.peek(vPk2, vPre2, 'pk2')
    while any(t == 'w1' for x, t in pend):
        take(1)
    e.stamp(6, 'F')
    e(f'v_mov_b32 v{tmp}, 0\n v_mov_b32 v{tmp + 1}, 0\n v_mov_b32 v{tmp + 2}, 0\n v_mov_b32 v{tmp + 3}, 0\n s_nop 3')
    swap4()
    for r in range(4):
        for k in range(4):
            lo = AC + 8 * k + (r if 2 * k <= 4 else 3 - r)
            hi = AC + 8 * k + 4 + (r if 2 * k + 1 <= 4 else 3 - r)
            e(f'v_cvt_pk_bf16_f32 v{H + 4 * r + k}, v{lo}, v{hi}')
        e(f'buffer_store_dwordx4 {vr(H + 4 * r, 4)}, v{vHo}, s[8:11], s42 offen offset:{256 * r} {ST}', tag='hst')
        for k in range(4 * r, 4 * r + 4):
            s, q = tmp + 2 * (k % 2), tmp + 2 * (k % 2) + 1
            e(f'v_dot2_f32_bf16 v{s}, v{H + k}, s51, v{s}\n v_dot2_f32_bf16 v{q}, v{H + k}, v{H + k}, v{q}')
    e.stamp(7, 'F')
    e(f'''
    v_add_f32 v{tmp}, v{tmp}, v{tmp + 2}
    v_add_f32 v{tmp + 1}, v{tmp + 1}, v{tmp + 3}
    v_permlane32_swap_b32 v{tmp}, v{tmp + 1}
    v_add_f32 v{tmp}, v{tmp}, v{tmp + 1}
    v_mov_b32 v{tmp + 1}, v{tmp}
    v_permlane16_swap_b32 v{tmp}, v{tmp + 1}
    v_add_f32 v{tmp}, v{tmp}, v{tmp + 1}
    v_mov_b32 v{vBar}, s45
    v_cndmask_b32 v{tmp}, v{tmp}, 0, s[34:35]
    ''')
    e(f'buffer_store_dword v{tmp}, v{vSo}, s[8:11], s43 offen {ST}', tag='hst')
    e.stamp(12)
    e.stamp(7, 'E')
    e.stamp(8, 'F')
    e.wait(vm='w1')
    e('s_barrier')
    e.stamp(8, 'E')
    def arrive():
        e.wait(vm='hst')
        e.arrive(vBar, 1)
        e.confirm(vPk2, vPre2, 's47', 'pk2')
    return w2l, arrive

CS = 16
vWp, vWs, vBC, vSt, vSa, vCs = 168, 171, 174, 175, 167, 156
WIN = 61440 - 61440 % W_K
def w1_frag(dst, slot, k, tag):
    b, o = divmod(W_K * k + (32 * slot if slot < 6 else 0), WIN)
    v = (vWp if slot < 6 else vWs) + b
    return [(f'ds_read_b64_tr_b16 {vr(dst + 2 * h, 2)}, v{v} offset:{o + 1792 * h}', tag) for h in range(2)]

def setup_c(e):
    e(f"""
    v_lshrrev_b32 v{vT0}, 5, v{vLane}
    v_bfe_u32 v{vT1}, v{vLane}, 2, 3
    v_lshl_add_u32 v{vT0}, v{vT0}, 4, v{vT1}
    v_mul_u32_u24 v{vT0}, 224, v{vT0}
    v_and_b32 v{vT1}, 3, v{vLane}
    v_lshl_add_u32 v{vT0}, v{vT1}, 3, v{vT0}
    s_lshl_b32 s3, s31, 5
    v_add_u32 v{vWp}, s3, v{vT0}
    v_add_u32 v{vWp + 1}, {WIN}, v{vWp}
    v_add_u32 v{vWp + 2}, {2 * WIN}, v{vWp}
    s_cmp_eq_u32 s31, 0
    s_cselect_b32 s3, 192, 0
    v_add_u32 v{vWs}, s3, v{vT0}
    v_add_u32 v{vWs + 1}, {WIN}, v{vWs}
    v_add_u32 v{vWs + 2}, {2 * WIN}, v{vWs}
    s_lshl_b32 s3, s20, 6
    s_cmp_eq_u32 s20, 3
    s_cselect_b64 vcc, -1, 0
    s_cselect_b32 s0, {OOB}, 0
    v_or_b32 v{vL16x}, s0, v{vL16}
    """)
    for b in range(3):
        e(f'v_add_u32 v{vCs + b}, s3, v{vWp + b}\n v_cndmask_b32 v{vCs + b}, v{vCs + b}, v{vWs + b}, vcc')
    e(f"""
    v_lshlrev_b32 v{vSa}, 6, v{vI}
    v_lshl_add_u32 v{vSa}, v{vG}, 4, v{vSa}
    v_cmp_le_u32 vcc, 48, v{vLane}
    v_cndmask_b32 v{vT0}, 0, v{vOne}, vcc
    v_lshl_or_b32 v{vSa}, v{vT0}, 31, v{vSa}
    s_lshl_b32 s0, s60, 3
    s_lshl_b32 s3, s20, 1
    s_add_u32 s0, s0, s3
    s_lshl_b32 s23, s0, 10
    s_add_u32 s23, s23, {SB}
    s_mul_i32 s21, s0, 20480
    s_add_u32 s21, s21, {HB}
    s_add_u32 s22, s21, 20480
    s_lshr_b32 s3, s0, 1
    s_add_u32 s3, s3, {C_BC}
    s_lshl_b32 s3, s3, 8
    v_mov_b32 v{vBC}, s3
    s_lshr_b32 s1, s61, 2
    s_cmp_lt_u32 s1, 3
    s_cselect_b32 s3, 0, {OOB}
    v_or_b32 v{vSt}, s3, v{vL16}
    s_and_b32 s48, s0, 0xfc
    s_add_u32 s48, s48, s1
    s_lshl_b32 s48, s48, 1
    s_add_u32 s48, s48, {C_CD}
    s_lshl_b32 s48, s48, 8
    s_mul_i32 s1, s1, 14
    s_mul_i32 s0, s0, 56
    s_add_u32 s0, s0, s1
    s_lshl_b32 s0, s0, 10
    s_add_u32 s0, s0, {H1B}
    s_and_b32 s1, s61, 3
    s_lshl_b32 s12, s1, 11
    s_add_u32 s12, s12, s0
    s_add_u32 s13, s12, 1024
    s_add_u32 s14, s1, 10
    s_lshl_b32 s14, s14, 10
    s_add_u32 s14, s14, s0
    s_lshr_b32 s15, s1, 1
    s_add_u32 s15, s15, 8
    s_lshl_b32 s15, s15, 10
    s_add_u32 s15, s15, s0
    s_lshl_b32 s3, s31, 3
    s_add_u32 s15, s15, s3
    """)

def colsums(e, pend, arrive):
    ONES, AC, FB = 44, 48, 56
    e.stamp(9, 'E')
    for k in range(4):
        e(f'v_mov_b32 v{ONES + k}, s51')
    def rd(k):
        b, o = divmod(W_K * k, WIN)
        for u in range(2):
            for h in range(2):
                e(f'ds_read_b64_tr_b16 {vr(FB + 8 * (k % 4) + 4 * u + 2 * h, 2)}, v{vCs + b} offset:{o + 32 * u + 1792 * h}', tag=f'c{k}')
    for k in range(3):
        rd(k)
    for k in range(20):
        if k == CFG['bat']:
            e.stamp(10, 'E')
            if arrive:
                arrive()
            e.stamp(11, 'E')
            e.take(pend, CFG['q3'])
        e.wait(lg=f'c{k}')
        for u in range(2):
            e(f'{MF} {vr(AC + 4 * u, 4)}, {vr(FB + 8 * (k % 4) + 4 * u, 4)}, {vr(ONES, 4)}, {vr(AC + 4 * u, 4) if k else 0}')
        if k + 3 < 20:
            rd(k + 3)
        if k > CFG['bat'] and k % 2 == 0:
            e.take(pend, CFG['q5'])
    e(f's_lshl_b32 s3, s20, 11\n s_add_u32 s3, s3, {R_CS}\n v_add_u32 v{vT0}, s3, v{vL16}')
    e(f'ds_write_b128 v{vT0}, {vr(AC, 4)}\n ds_write_b128 v{vT0}, {vr(AC + 4, 4)} offset:1024')
    e(f'v_add_u32 v{vT0}, {R_CS}, v{vL16}\n s_waitcnt lgkmcnt(0)\n s_barrier')
    for a in range(7):
        e(f'ds_read_b128 {vr(CS + 4 * a, 4)}, v{vT0} offset:{1024 * a}')
    e.take(pend, CFG['q6'])
    e('s_waitcnt lgkmcnt(0)')

def pair_reduce(a, b):
    return f"""
    v_permlane32_swap_b32 v{a}, v{b}
    v_add_f32 v{a}, v{a}, v{b}
    v_mov_b32 v{b}, v{a}
    v_permlane16_swap_b32 v{a}, v{b}
    v_add_f32 v{a}, v{a}, v{b}
    v_mov_b32 v{b}, v{a}
    v_permlane32_swap_b32 v{a}, v{b}
    """

def phase_c(e, pend):
    vM = 12
    AC, FB, ST0, PK = 44, 100, 132, 140
    NF = 8
    acc = lambda a, rt: AC + 8 * a + 4 * rt
    def rd(seq, n):
        k, a = seq[n]
        return w1_frag(FB + 4 * ((n + (off2 if seq is seq2 else 0)) % NF), a, k, f'w{n}')
    p1, p2 = ((0, 1, 2, 3, 6), (4, 5)) if CFG['split'] == 5 else ((0, 1, 2, 3), (4, 5, 6))
    seq1 = [(k, a) for k in range(20) for a in p1]
    seq2 = [(k, a) for k in range(20) for a in p2]
    off2 = len(seq1) % NF
    for n in range(NF - 1):
        e.take(rd(seq1, n))
    e.stamp(13)
    e.spin(vT1, vBC, 10, 1)
    e.stamp(14)
    for rt in range(2):
        e(f'buffer_load_dwordx4 {vr(ST0 + 4 * rt, 4)}, v{vSa}, s[8:11], s23 offen offset:{1024 * rt} {LD}', tag='st')
    hl = []
    for k in range(20):
        for rt in range(2):
            t = f'buffer_load_dwordx4 {vr(8 * k + 4 * rt, 4, "a")}, v{vOob if CFG["skiph"] else vL16}, s[8:11], s{21 + rt} offen offset:{1024 * (k % 4)} {LD}'
            if k % 4 == 3:
                t += f'\n s_add_u32 s{21 + rt}, s{21 + rt}, 4096'
            hl.append((t, f'h{k}'))
    first = [hl.pop(0) for _ in range(CFG['h0'])]
    e.take(first, 3)
    Mix(e, first, 10)(setup_d())
    e.take(first)
    e.wait(vm='st')
    e(f'v_add_f32 v{vM}, v{ST0}, v{ST0 + 2}\n v_add_f32 v{vM + 1}, v{ST0 + 4}, v{ST0 + 6}')
    e(pair_reduce(vM, vM + 1))
    e(f"""
    v_mul_f32 v{vM}, {flit(-1 / 640)}, v{vM}
    v_mul_f32 v{vM + 1}, {flit(-1 / 640)}, v{vM + 1}
    v_cvt_pk_bf16_f32 v{vM + 1}, v{vM}, v{vM + 1}
    v_lshlrev_b32 v{vM}, 16, v{vM + 1}
    v_and_b32 v{vM + 1}, 0xffff0000, v{vM + 1}
    """)
    init = lambda a: [(f'v_pk_mul_f32 {vr(acc(a, rt) + 2 * k, 2)}, {vr(CS + 4 * a + 2 * k, 2)}, {vr(vM, 2)} op_sel:[0,{rt}] op_sel_hi:[1,{rt}]', None)
                      for rt in range(2) for k in range(2)]
    for a in p1:
        e.take(init(a))
    later = [t for a in p2 for t in init(a)]
    npk = [0]
    def epi(slots, rt, so, tag):
        out = []
        p = PK + 4 * (npk[0] % 4); npk[0] += 1
        for n, a in enumerate(slots):
            for k in range(2):
                out.append((f'v_cvt_pk_bf16_f32 v{p + 2 * n + k}, v{acc(a, rt) + 2 * k}, v{acc(a, rt) + 2 * k + 1}', None))
        out += [(f'v_pk_max_i16 v{p + k}, v{p + k}, 0', None) for k in range(2 * len(slots))]
        t = f's_add_u32 {so}, {so}, {56 * 1024}\n' if rt else ''
        out.append((t + (f'buffer_store_dwordx4 {vr(p, 4)}, v{vL16}, s[8:11], {so} offen {ST}' if len(slots) == 2 else
                         f'buffer_store_dwordx2 {vr(p, 2)}, v{vSt}, s[8:11], {so} offen {ST}'), tag))
        return out
    def gemm(seq, nxt, hook):
        for n, (k, a) in enumerate(seq):
            e.wait(vm=f'h{k}', lg=f'w{n}')
            m = n + NF - 1
            reads = rd(seq, m) if m < len(seq) else (rd(nxt, m - len(seq)) if nxt else [])
            for rt in range(2):
                d = vr(acc(a, rt), 4)
                e(f'{MF} {d}, {vr(FB + 4 * ((n + (off2 if seq is seq2 else 0)) % NF), 4)}, {vr(8 * k + 4 * rt, 4, "a")}, {d}')
                e.take(reads, 1)
                hook(n, k, rt)
    def hook1(n, k, rt):
        if rt == 1:
            due = (n + 1) * 2 // len(p1) - n * 2 // len(p1)
            e.take(hl if due else later, 1)
    gemm(seq1, seq2, hook1)
    assert not hl and not later
    e.stamp(15)
    fill = []
    for (slots, so) in (((0, 1), 's12'), ((2, 3), 's13')) + ((((6,), 's15'),) if 6 in p1 else ()):
        for rt in range(2):
            fill += epi(slots, rt, so, 'u1')
    free_after = {8: 8, 9: 10, 10: 13, 11: 15, 12: 18, 13: 99}
    def hook2(n, k, rt):
        if fill:
            if n >= 2:
                e.take(fill, CFG['cfill'])
        elif rt == 1 and pend and n % CFG['c2'] == 0:
            if k > free_after.get(int(pend[0][1][3:]), -1):
                e.take(pend, 1)
        if n == CFG['u1at'] and rt == 1:
            e.wait(vm='u1')
            e(f'v_mov_b32 v{vT0}, s48')
            e.arrive(vT0, 1)
    gemm(seq2, None, hook2)
    for so, slots in (('s14', (4, 5)),) + ((('s15', (6,)),) if 6 in p2 else ()):
        for rt in range(2):
            e.take(epi(slots, rt, so, 'u2'))
    e.stamp(16)

vDm, vDh, vOo, vOo2, vDw, vRd, vC1, vPk = 156, 157, 14, 15, 158, 161, 162, 163
def setup_d():
    t = d_role('s31', 's30') + f"""
    s_lshl_b32 s33, s60, 3
    s_lshl_b32 s34, s30, 2
    s_add_u32 s33, s33, s34
    s_add_u32 s38, s33, s20
    s_lshl_b32 s3, s38, 1
    s_add_u32 s3, s3, {C_CD}
    s_lshl_b32 s3, s3, 8
    v_mov_b32 v{vC1}, s3
    s_mul_i32 s39, s20, 14
    """
    for r in range(4):
        t += f"""
        s_add_u32 s3, s20, {r + 1}
        s_and_b32 s3, s3, 3
        s_mul_i32 s40, s3, 15360
        s_add_u32 s3, s3, s33
        s_mul_i32 s3, s3, 56
        s_add_u32 s3, s3, s39
        s_lshl_b32 s3, s3, 10
        s_add_u32 s{34 + r}, s3, {H1B}
        v_add_u32 v{vDw + r}, s40, v{vL16}
        """
    t += f"""
    v_lshlrev_b32 v{vDh}, 4, v{vI}
    v_lshl_add_u32 v{vDm}, v{vG}, 8, v{vDh}
    v_lshrrev_b32 v{vT0}, 5, v{vLane}
    v_lshl_add_u32 v{vDh}, v{vT0}, 8, v{vDh}
    v_and_b32 v{vT0}, 1, v{vG}
    v_lshl_add_u32 v{vDh}, v{vT0}, 3, v{vDh}
    s_lshl_b32 s41, s38, 10
    s_add_u32 s41, s41, {SB}
    s_mul_i32 s40, s38, 20480
    s_mul_i32 s3, s31, 2560
    s_add_u32 s40, s40, s3
    s_add_u32 s40, s40, {HB}
    s_sub_u32 s3, 32, s60
    s_cmp_eq_u32 s60, 0
    s_cselect_b32 s3, 16, s3
    s_cmp_eq_u32 s30, 0
    s_cselect_b32 s39, s60, s3
    v_lshl_add_u32 v{vOo}, s20, 4, v{vI}
    v_lshl_add_u32 v{vOo}, v{vOo}, 5, s39
    v_mul_u32_u24 v{vOo}, 1280, v{vOo}
    v_lshl_add_u32 v{vOo2}, v{vG}, 3, v{vOo}
    v_lshl_add_u32 v{vOo}, v{vG}, 4, v{vOo}
    s_mul_i32 s39, s31, 160
    """
    return t

def h1_load(n, rt):
    return (f's_add_u32 s3, s{34 + rt}, {4096 * (n // 4)}\n' +
            f'buffer_load_dwordx4 {ringreg(n, rt)}, v{vOob if CFG["skiph1"] else vL16x if n in (8, 9) else vL16}, s[8:11], s3 offen offset:{1024 * (n % 4)} {LD}',
            f'r{n}_{rt}' if n >= 10 else f'r{n}')

def phase_d(e, pend):
    vM, vR, vW = 11, 12, vDw
    AC, ST0, HR, HF, PB = 16, 104, 108, 176, 196
    misc = [(f'buffer_load_dwordx4 {vr(ST0, 4)}, v{vSa}, s[8:11], s41 offen {LD}', 'st'),
            (f'buffer_load_dwordx4 {vr(HR, 4)}, v{vDm}, s[8:11], s40 offen {LD}', 'st'),
            (f'buffer_load_dwordx4 {vr(HR + 4, 4)}, v{vDm}, s[8:11], s40 offen offset:1024 {LD}', 'st'),
            (f'buffer_load_dwordx2 {vr(HR + 8, 2)}, v{vDh}, s[8:11], s40 offen offset:2048 {LD}', 'st')]
    e(f's_add_u32 s48, s48, 256\n v_mov_b32 v{vT0}, s48')
    e.take(pend, CFG['d0'])
    e.wait(vm='u2')
    e.arrive(vT0, 1)
    e.take(pend, CFG['d1'])
    e.spin(vPk, vC1, 8, 1)
    e.stamp(17)
    stream = [h1_load(n, rt) for n in range(10) for rt in range(4)] + [h1_load(n, rt) for rt in range(4) for n in range(10, 14)]
    e.take(stream, 12)
    e(f'v_add_u32 v{vC1}, 256, v{vC1}')
    extra = pend + misc
    per = -(-len(extra) // 8)
    while extra and extra[0][1].startswith('w2_') and int(extra[0][1][3:]) < 2:
        e.take(extra, 1)
    dacc = lambda rt, a: vr(AC + 20 * rt + 4 * a, 4)
    for n in range(10):
        p2 = 7 if CFG['split'] == 5 else 5
        if n == p2 - 1:
            e.peek(vPk, vC1, 'pk')
        if n == p2:
            e.confirm(vPk, vC1, 8, 'pk')
        if n == 8:
            e('s_barrier')
        fill = [stream.pop(0) for _ in range(4)] + [extra.pop(0) for _ in range(min(per, len(extra)))]
        assert not any(t == f'w2_{n}' for _, t in fill + extra)
        e.wait(vm=(f'w2_{n}', f'r{n}'))
        step = max(1, 20 // len(fill))
        for rt in range(4):
            for a in range(5):
                e(f'{MF} {dacc(rt, a)}, {w2reg(n, a)}, {ringreg(n, rt)}, {dacc(rt, a) if n else 0}')
                if (5 * rt + a) % step == 0:
                    e.take(fill, 1)
        e.take(fill)
    assert not extra
    e.stamp(9, 'D')
    prep = [('WAITST', None), (f'v_add_f32 v{vM}, v{ST0}, v{ST0 + 2}', None), (f'v_add_f32 v{vR}, v{ST0 + 1}, v{ST0 + 3}', None)]
    prep += [(l.strip(), None) for l in (pair_reduce(vM, vR) + f"""
    v_mul_f32 v{vM}, {flit(1 / 640)}, v{vM}
    v_mul_f32 v{vR}, {flit(1 / 640)}, v{vR}
    v_fma_f32 v{vR}, -v{vM}, v{vM}, v{vR}
    v_max_f32 v{vR}, 0, v{vR}
    v_add_f32 v{vR}, {flit(1e-5)}, v{vR}
    v_rsq_f32 v{vR}, v{vR}
    """).split('\n') if l.strip()]
    for k in range(10):
        prep += [(f'v_lshlrev_b32 v{HF + 2 * k}, 16, v{HR + k}', None), (f'v_and_b32 v{HF + 2 * k + 1}, 0xffff0000, v{HR + k}', None)]
    writes = []
    for rt in range(4):
        for n in range(10, 14):
            e.wait(vm=(f'w2_{n}', f'r{n}_{rt}'))
            for a in range(5):
                e(f'{MF} {dacc(rt, a)}, {w2reg(n, a)}, {ringreg(n, rt)}, {dacc(rt, a)}')
                if stream and a == 0:
                    e.take(stream, 1)
                elif writes and n > 10 and a % 2 == 0:
                    e.take(writes, 1)
                elif prep and rt > 0:
                    if prep[0][0] == 'WAITST':
                        prep.pop(0); e.wait(vm='st')
                    e.take(prep, 1)
        e.take(writes)
        if rt < 3:
            writes = [(f'ds_write_b128 v{vW + rt}, {dacc(rt, a)} offset:{5120 * rt + 1024 * a}', None) for a in range(5)]
    e.take(prep)
    e('s_waitcnt lgkmcnt(0)\n s_barrier')
    e.stamp(10, 'D')
    for a in range(5):
        for r in range(3):
            e(f'ds_read_b128 {vr(PB + 12 * a + 4 * r, 4)}, v{vRd} offset:{5120 * r + 1024 * a}', tag=f'q{a}')
    for a in range(5):
        e.wait(lg=f'q{a}')
        o, q = AC + 60 + 4 * a, PB + 12 * a
        for k in (0, 2):
            e(f'v_pk_add_f32 {vr(o + k, 2)}, {vr(o + k, 2)}, {vr(q + k, 2)}\n v_pk_add_f32 {vr(q + 4 + k, 2)}, {vr(q + 4 + k, 2)}, {vr(q + 8 + k, 2)}')
        for k in (0, 2):
            e(f'v_pk_add_f32 {vr(o + k, 2)}, {vr(o + k, 2)}, {vr(q + 4 + k, 2)}')
        for k in (0, 2):
            e(f'v_pk_fma_f32 {vr(o + k, 2)}, {vr(o + k, 2)}, {vr(vR, 2)}, {vr(HF + 4 * a + k, 2)} op_sel_hi:[1,0,1]')
        for k in range(2):
            e(f'v_cvt_pk_bf16_f32 v{HR + 2 * a + k}, v{o + 2 * k}, v{o + 2 * k + 1}')
        if a in (1, 3):
            e(f'buffer_store_dwordx4 {vr(HR + 2 * a - 2, 4)}, v{vOo}, s[16:19], s39 offen offset:{32 * (a - 1)} {CFG["opol"]}')
    e(f'buffer_store_dwordx2 {vr(HR + 8, 2)}, v{vOo2}, s[16:19], s39 offen offset:128 {CFG["opol"]}')
    e.stamp(11, 'D')

def dump_stamps(e, nst):
    if not CFG['stamps']:
        return
    e(f'''
    s_waitcnt vmcnt(0)
    {CFG["clk"]} s[0:1]
    s_lshl_b32 s3, s2, 2
    s_add_u32 s3, s3, s20
    s_lshl_b32 s3, s3, 7
    s_add_u32 s3, s3, {TSB}
    s_waitcnt lgkmcnt(0)
    s_mov_b64 exec, 1
    v_mov_b32 v0, 0
    ''')
    if CFG['dbgwg'] >= 0:
        e(f's_cmp_lg_u32 s2, {CFG["dbgwg"]}\n s_cbranch_scc1 L_done\n s_cmp_lg_u32 s20, 0\n s_cbranch_scc1 L_done')
        for k, n in enumerate([1, 2, 3, 5, 7, 8, 9, 10, 11, 12, 14, 15, 16, 17]):
            e(f's_sub_u32 s3, s{64 + 2 * n}, s64\n v_mov_b32 v1, s3\n buffer_store_dword v1, v0, s[56:59], 0 offen offset:{4 * k + 32}')
        e(f's_sub_u32 s3, s0, s64\n v_mov_b32 v1, s3\n buffer_store_dword v1, v0, s[56:59], 0 offen offset:88')
        return
    for n in range(nst):
        e(f'v_mov_b32 v1, s{64 + 2 * n}\n buffer_store_dword v1, v0, s[8:11], s3 offen offset:{4 * n}')
    e(f'v_mov_b32 v1, s0\n buffer_store_dword v1, v0, s[8:11], s3 offen offset:{4 * nst}')

def build():
    e = K()
    phase_a(e)
    e.vm = ['old']
    w1l = [l for i in range(4) for l in w1_step(i)][CFG['w0']:]
    early = [l for n in range(8) for l in w2_loads(n)]
    late = [l for n in range(8, 14) for l in w2_loads(n)]
    e('s_cmp_ge_u32 s37, 5\n s_cbranch_scc1 LB_idle')
    tot0 = e.total
    pend, arrive = phase_b(e, list(w1l) + w1_step(4), list(early))
    done = len(early) - len(pend)
    rest = list(pend)
    colsums(e, pend, arrive)
    e('s_branch LB_join\n LB_idle:')
    e.vm, e.lg = [], []
    e.total = tot0
    w1l = list(w1l)
    task_finish(e, w1l)
    setup_c(e)
    e.take(w1l)
    e('s_barrier')
    e.take(w1_step(4))
    e.peek(vPk2, vPre2, 'pk2')
    e.confirm(vPk2, vPre2, 's47', 'pk2', slp=CFG['slpi'])
    e.stamp(12)
    e('s_barrier')
    e.take(early[:done])
    colsums(e, rest, None)
    e('LB_join:')
    e.vm = []
    pend += late
    phase_c(e, pend)
    phase_d(e, pend)
    if CFG['padto'] and CFG['padat'] == 18:
        e(f'Lpad:\n s_memrealtime s[96:97]\n s_waitcnt lgkmcnt(0)\n s_sub_u32 s96, s96, s98\n s_cmp_lt_u32 s96, {CFG["padto"]}\n s_cbranch_scc1 Lpad')
    dump_stamps(e, 18)
    e('L_done:\n s_endpgm')
    print('instructions', len(e.ins), 'nops', e.nops, file=sys.stderr)
    name = NAME + '_kernel'
    hdr = open('cdna_kernels/' + NAME + '.s.ref').read().split('; Override launch')[0]
    return (hdr + '; @launch grid=(256,1,1) block=(256,1,1) lds=163840\n.amdgcn_target "amdgcn-amd-amdhsa--gfx950"\n.text\n'
            f'.globl {name}\n.p2align 8\n.type {name},@function\n{name}:\n' + e.text() +
            '\n.section .rodata,"a"\n.p2align 6\n' + kd(name, 512, 102, 256))

if __name__ == '__main__':
    for a in sys.argv[2:]:
        k, _, v = a.partition('=')
        assert k in CFG, k
        CFG[k] = (int(v) if v.lstrip('-').isdigit() else v.replace('none', '')) if v else True
    open(sys.argv[1], 'w').write(build())
```

```python
import sys
sys.path.insert(0, 'tools')
from emit import *
from asmlib import *
from model import IDX_LO, IDX_HI

W1B, W2B, VB, HB, SB, H1B = 0x100000, 0x400000, 0x700000, 0xB00000, 0xE00000, 0x1000000
WS_BYTES = 0x1800000
XB = 2048 * 1280
MF = 'v_mfma_f32_16x16x32_bf16'
ST, LD = 'sc1', 'sc1'
C_BAR, C_PRE1, C_PRE2, C_BC, C_CD = 0, 128, 160, 192, 256
OOB = 0x80000000
TSB = 0x40000
SPIN = 100000

CFG = dict(stamps=False, clk='s_memrealtime', dbg='', xpol='', wpol='', cpf=1, slp=2, slpi=20,
           dbgwg=-1, wsoff=0, tlb=0, padto=0, padat=18, pfirst=0, cpfearly=1, bmix=6, cfill=2, w1pol='', rpol='', w1a=6, rot=0, tat=1, touch=1, ta=0, hoist=0, jmap=0, skipw2=0, skipw1=0, nosync=0, skiph1=0, skiph=0, lite=0, tpol='', w0=6, n0=5, xmix=14, pre0=2, pret=0, nopre=0, nov=0, vpol='sc1', ppol='sc1', dst='', p1=36, q1=3, q2=5, q3=8, q4=8, c2=2, u1at=36, w1left=8, q5=1, q6=6, bat=9, opol='sc1', split=4, d1=0, pk2at=20, h0=10, d0=10)

vLane, vG, vI, vL16, vOne, vT0, vT1, vT2, vT3 = 1, 2, 3, 4, 5, 6, 7, 8, 9

class K(Emit):
    nlab = 0
    def lab(self, s):
        K.nlab += 1
        return f'L{s}{K.nlab}'
    def stamp(self, n, grp=''):
        if CFG['padto'] and CFG['padat'] == n and grp == '':
            l = self.lab('pad')
            self(f'{l}:\n s_memrealtime s[96:97]\n s_waitcnt lgkmcnt(0)\n s_sub_u32 s96, s96, s98\n s_cmp_lt_u32 s96, {CFG["padto"]}\n s_cbranch_scc1 {l}')
        if CFG['stamps'] and (n == 0 or not CFG['lite']) and (grp == CFG['dbg'] or (grp == '' and not (CFG['dbg'] and 9 <= n <= 12 and CFG['dbg'] != 'B'))):
            self(f'{CFG["clk"]} s[{64 + 2 * n}:{65 + 2 * n}]')
    def spin(self, v, vaddr, target, mask, srd='s[8:11]', slp=None):
        l, d = self.lab('poll'), self.lab('polld')
        self(f's_mov_b64 exec, {mask}\n s_mov_b32 s63, {0 if CFG["nosync"] else SPIN}\n {l}:')
        self(f'buffer_load_dword v{v}, v{vaddr}, {srd}, 0 offen sc1')
        self(f's_sub_u32 s63, s63, 1\n s_cbranch_scc1 {d}\n s_waitcnt vmcnt(0)')
        self(f'v_cmp_ne_u32 vcc, {target}, v{v}\n s_cbranch_vccz {d}\n s_sleep {CFG["slp"] if slp is None else slp}\n s_branch {l}')
        self(f'{d}:\n s_waitcnt vmcnt(0)\n s_mov_b64 exec, -1')
    def peek(self, v, vaddr, tag, srd='s[8:11]'):
        self(f'buffer_load_dword v{v}, v{vaddr}, {srd}, 0 offen sc1', tag=tag)
    def confirm(self, v, vaddr, target, tag, srd='s[8:11]', slp=None, mask=1):
        l = self.lab('ok')
        self.wait(vm=tag)
        keep, tot = list(self.vm), self.total
        self(f'v_cmp_ne_u32 vcc, {target}, v{v}\n s_cbranch_vccz {l}')
        self.spin(v, vaddr, target, mask, srd, slp)
        self(f'{l}:')
        self.vm, self.total = keep, tot
    def arrive(self, vaddr, mask):
        self(f's_mov_b64 exec, {mask}\n buffer_atomic_add v{vOne}, v{vaddr}, s[8:11], 0 offen sc1\n s_mov_b64 exec, -1')
    def take(self, lst, k=10 ** 6):
        for _ in range(min(k, len(lst))):
            t, tag = lst.pop(0)
            self(t, tag=tag)

def nib(lst):
    return sum(x << (4 * k) for k, x in enumerate(lst))

def round_bf16(e, v, t):
    e(f'v_cvt_pk_bf16_f32 v{t}, v{v}, v{v}\n v_lshlrev_b32 v{v}, 16, v{t}')

class Mix:
    def __init__(self, e, side, period):
        self.e, self.side, self.period, self.n = e, side, period, 0
    def __call__(self, text):
        for line in text.strip().split('\n'):
            if line.strip():
                self.e(line)
                self.n += 1
                if self.n >= self.period and not line.strip().startswith(('s_cmp', 's_cselect')):
                    self.n = 0
                    self.e.take(self.side, 1)

A_MAT, A_G, A_X = 0, 40960, 53248
W_K = 7168
R_BASE = 18 * W_K
R_CS = 20 * W_K
T_STG, X_STG, V_STG = 122880, 147456, 20 * W_K

JMAP = ([0, 3, 4, 7, 5, 6, 1, 2], [8, 11, 12, 13, 14, 15, 9, 10])
vXr = 167
vOob = 159
def roles(e):
    e(f"""
    s_bfe_u32 s60, s2, 0x20001
    s_lshl_b32 s60, s60, 2
    s_bfe_u32 s3, s2, 0x20003
    s_add_u32 s60, s60, s3
    s_bfe_u32 s3, s2, 0x10005
    s_lshl_b32 s50, s22, 1
    s_add_u32 s50, s50, s3
    s_lshr_b32 s37, s50, 1
    s_cmp_eq_u32 s37, 3
    s_cselect_b32 s37, 5, s37
    s_add_u32 s36, s37, 3
    s_lshl_b32 s3, s50, 2
    s_lshr_b32 s61, {nib(JMAP[0] if CFG['jmap'] else range(8))}, s3
    s_lshr_b32 s38, {nib(JMAP[1] if CFG['jmap'] else range(8, 16))}, s3
    s_bitcmp1_b32 s2, 0
    s_cselect_b32 s37, s37, s36
    s_cselect_b32 s61, s38, s61
    s_cselect_b32 s3, 8, 0
    s_and_b32 s61, s61, 15
    s_and_b32 s36, s50, 1
    s_or_b32 s50, s50, s3
    s_sub_u32 s3, 4, s37
    s_cmp_eq_u32 s36, 0
    s_cselect_b32 s38, s37, s3
    """)
    q_of_half(e, 's39', 's36')
    e(d_role('s44', None))
    e(f"""
    s_lshl_b32 s35, s20, 9
    s_add_u32 s35, s35, s39
    s_mul_i32 s35, s35, 1280
    s_lshl_b32 s3, s38, 8
    s_add_u32 s35, s35, s3
    s_lshl_b32 s53, s20, 12
    s_add_u32 s53, s53, {X_STG}
    v_mul_u32_u24 v{vXr}, 40960, v{vG}
    v_xor_b32 v{vT2}, v{vI}, v{vG}
    v_lshl_add_u32 v{vXr}, v{vT2}, 4, v{vXr}
    """)

def w1_setup(e):
    if CFG['skipw1'] or CFG['skipw2'] or CFG['skiph'] or CFG['skiph1']:
        e(f'v_mov_b32 v{vOob}, {OOB}')
    e(f"""
    s_mul_i32 s30, s61, 7
    s_mul_i32 s3, s61, 6
    s_add_u32 s3, s3, 12
    s_cmp_le_u32 s61, 11
    s_cselect_b32 s30, s30, s3
    s_cselect_b32 s47, 14, 12
    s_and_b32 s31, s30, 1
    s_lshl_b32 s32, s30, 5
    s_mul_i32 s3, s20, {32 * 3456}
    s_add_u32 s32, s32, s3
    s_mul_i32 s55, s20, {W_K}
    s_movk_i32 s3, 3456
    """)
    for n in range(7):
        e(f"""
        v_add_u32 v{vT0}, {64 * n}, v{vLane}
        v_mul_u32_u24 v{vT1}, 4682, v{vT0}
        v_lshrrev_b32 v{vT1}, 16, v{vT1}
        v_mad_i32_i24 v{vT0}, v{vT1}, -14, v{vT0}
        v_lshrrev_b32 v{vT2}, 1, v{vT1}
        v_cmp_le_u32 vcc, s47, v{vT0}
        v_xor_b32 v{vT2}, v{vT2}, v{vT1}
        v_and_b32 v{vT2}, 4, v{vT2}
        v_mul_u32_u24 v{vT2}, 3, v{vT2}
        v_xor_b32 v{vT1}, v{vT1}, v{vT2}
        v_lshlrev_b32 v{vT0}, 4, v{vT0}
        v_mad_u32_u24 v{vT0}, v{vT1}, s3, v{vT0}
        v_cndmask_b32 v{vT1}, 0, v{vOne}, vcc
        v_lshl_or_b32 v{vW1 + n}, v{vT1}, 31, v{vT0}
        """)
    e(f"""
    s_mul_i32 s46, s44, 56
    s_mul_i32 s3, s20, 14
    s_add_u32 s46, s46, s3
    s_mul_i32 s46, s46, 5120
    s_add_u32 s46, s46, {W2B}
    s_cmp_eq_u32 s20, 3
    s_cselect_b32 s47, 12, 14
    """)

def d_role(c8, half):
    t = f's_lshr_b32 {c8}, s50, 3\n s_lshl_b32 {c8}, {c8}, 2\n s_and_b32 s3, s50, 3\n s_or_b32 {c8}, {c8}, s3\n'
    return t + (f's_bfe_u32 {half}, s50, 0x10002' if half else '')

def phase_a(e):
    X, F, M0, M1 = 16, 56, 64, 68
    GA, TA, TP, VA, PR = 72, 92, 132, 172, 204
    AF, GR, SM, ONES, PR2 = X, 92, 96, 100, 152
    vXo, vGw, vGr, vSg, vS, vQ = 10, 11, 12, 13, 14, 15
    vS2, vRdy, vP0, vP1, vP4, vPs, vPa, vPb, vPd, vZ = 224, 225, 226, 227, 228, 229, 230, 231, 232, 233
    vD, vD4, vMa, vMb, vHi, vMid = 234, 112, 239, 240, 241, 242
    tmp, vXa, vPv, vPw = 244, VA, 238, 243
    def code_prefetch():
        lp, ln = e.lab('pc'), e.lab('nopf')
        e(f'''
        s_getpc_b64 s[46:47]
        {lp}:
        s_bfe_u32 s3, s2, 0x30003
        v_lshl_add_u32 v{vT0}, v0, 3, s3
        v_lshlrev_b32 v{vT0}, 7, v{vT0}
        v_cmp_gt_u32 vcc, L_done - {lp}, v{vT0}
        s_and_saveexec_b64 s[44:45], vcc
        s_cbranch_execz {ln}
        global_load_dword a255, v{vT0}, s[46:47]
        {ln}:
        s_mov_b64 exec, -1
        ''')
        e.vm.pop()
    e.stamp(0)
    if CFG['padto']:
        e('s_memrealtime s[98:99]')
    e(f'''
    s_load_dwordx2 s[4:5], s[0:1], 0
    s_load_dwordx2 s[8:9], s[0:1], 80
    s_load_dwordx4 s[24:27], s[0:1], 48
    s_load_dwordx4 s[28:31], s[0:1], 64
    s_cmp_ge_u32 s2, 256
    s_cbranch_scc1 L_done
    v_lshrrev_b32 v{vT2}, 6, v0
    v_and_b32 v{vLane}, 63, v0
    v_readfirstlane_b32 s20, v{vT2}
    v_lshrrev_b32 v{vPv}, 3, v{vLane}
    v_and_b32 v{vT1}, 7, v{vLane}
    v_mul_u32_u24 v{vXo}, 81920, v{vPv}
    v_lshlrev_b32 v{vT2}, 1, v{vPv}
    v_and_b32 v{vT2}, 4, v{vT2}
    v_xor_b32 v{vT2}, v{vT2}, v{vT1}
    v_lshl_add_u32 v{vXo}, v{vT2}, 4, v{vXo}
    s_mov_b32 s6, {XB}
    s_mov_b32 s7, 0x20000
    s_and_b32 s21, s2, 63
    s_lshr_b32 s22, s2, 6
    s_xor_b32 s22, s22, 3
    s_mul_i32 s23, s21, 1280
    s_mul_i32 s3, s20, 655360
    s_add_u32 s23, s23, s3
    s_lshl_b32 s52, s20, 10
    s_add_u32 s53, s52, {A_X}
    s_add_u32 s54, s23, 640
    s_add_u32 s55, s53, 20480
    s_bitcmp1_b32 s22, 0
    s_cselect_b32 s62, s54, s23
    s_cselect_b32 s63, s55, s53
    s_cselect_b32 s23, s23, s54
    s_cselect_b32 s53, s53, s55
    ''')
    if CFG['cpf'] and CFG['cpfearly']:
        code_prefetch()
    e(f'''
    s_mov_b32 s10, {WS_BYTES}
    s_mov_b32 s11, 0x20000
    v_mov_b32 v{vZ}, 0
    s_lshl_b32 s3, s20, 3
    s_or_b32 s50, s3, s2
    s_cmp_ge_u32 s50, 8
    s_waitcnt lgkmcnt(0)
    {'s_cselect_b32 s3, 1, 0' if CFG['wsoff'] else ''}
    {'s_add_u32 s8, s8, %d' % (CFG['wsoff'] << 20) if CFG['wsoff'] else ''}
    {'s_addc_u32 s9, s9, 0' if CFG['wsoff'] else ''}
    {'s_cmp_lg_u32 s3, 0' if CFG['wsoff'] else ''}
    s_cbranch_scc1 LA_nozero
    v_lshlrev_b32 v{vT2}, 8, v{vLane}
    s_lshl_b32 s3, s2, 14
    buffer_store_dword v{vZ}, v{vT2}, s[8:11], s3 offen sc1
    LA_nozero:
    ''', tag='zero')
    for so, mo in (('s62', 's63'), ('s23', 's53')):
        for n in range(5):
            e(f's_add_u32 m0, {mo}, {3968 * n}\n buffer_load_dwordx4 v{vXo}, s[4:7], {so} offen offset:{128 * n} {CFG["xpol"]} lds', tag='x')
    e.stamp(1)
    mx = Mix(e, [], 1000)
    e(f'''
    s_mov_b32 s12, s26
    s_mov_b32 s13, s27
    s_mov_b32 s14, {640 * 3456}
    s_mov_b32 s15, 0x20000
    s_mov_b32 s26, {640 * 3456}
    s_mov_b32 s27, 0x20000
    s_mov_b32 s16, s28
    s_mov_b32 s17, s29
    s_mov_b32 s18, {XB}
    s_mov_b32 s19, 0x20000
    v_and_b32 v{vT0}, 1, v{vLane}
    v_lshrrev_b32 v{vG}, 4, v{vLane}
    v_and_b32 v{vI}, 15, v{vLane}
    v_lshlrev_b32 v{vL16}, 4, v{vLane}
    v_mov_b32 v{vOne}, 1
    ''')
    if CFG['tlb']:
        step = CFG['tlb'] << 10
        guarded(e, 's_cmp_eq_u32 s20, 1', [f'''
        v_mul_u32_u24 v{vT2}, {step}, v{vLane}
        s_lshl_b32 s3, s2, 7
        buffer_load_dword a252, v{vT2}, s[8:11], s3 offen
        buffer_load_dword a251, v{vT2}, s[16:19], s3 offen
        buffer_load_dword a250, v{vT2}, s[12:15], s3 offen
        buffer_load_dword a249, v{vT2}, s[24:27], s3 offen
        '''])
    mx(f'''
    v_lshrrev_b32 v{vHi}, 3, v{vI}
    s_add_u32 s41, s22, 1
    s_cmp_lt_u32 s22, 3
    s_cselect_b32 s41, s41, 0
    s_cselect_b32 s42, 0, 4
    s_cselect_b32 s43, 2, 0
    v_mul_u32_u24 v{vT1}, s42, v{vHi}
    v_add_u32 v{vT1}, s41, v{vT1}
    v_mul_u32_u24 v{vT2}, s43, v{vHi}
    v_mad_u32_u24 v{vT2}, v{vT1}, v{vG}, v{vT2}
    v_cvt_f32_u32 v{vT2}, v{vT2}
    v_mul_f32 v{vT2}, {flit(0.125)}, v{vT2}
    v_cos_f32 v{vT2}, v{vT2}
    v_and_b32 v{vT1}, 1, v{vT1}
    v_lshlrev_b32 v{vT1}, 15, v{vT1}
    v_cvt_pk_bf16_f32 v{tmp}, v{vT2}, 0
    v_mov_b32 v{tmp + 1}, 0
    v_xor_b32 v{tmp + 2}, v{vT1}, v{tmp}
    v_mov_b32 v{tmp + 3}, 0
    v_and_b32 v{vT1}, 3, v{vLane}
    v_lshlrev_b32 v{vT2}, 4, v{vT1}
    v_bfe_u32 v{vMid}, v{vI}, 2, 1
    v_lshlrev_b64 {vr(tmp, 2)}, v{vT2}, {vr(tmp, 2)}
    v_lshlrev_b64 {vr(tmp + 2, 2)}, v{vT2}, {vr(tmp + 2, 2)}
    v_cmp_eq_u32 vcc, 0, v{vMid}
    v_lshlrev_b32 v{vSg}, 31, v{vT0}
    v_lshrrev_b32 v{vT2}, 16, v{vSg}
    ''')
    for h in range(2):
        for k in range(2):
            mx(f'v_cndmask_b32 v{F + 4 * h + k}, 0, v{tmp + 2 * h + k}, vcc\n v_cndmask_b32 v{F + 4 * h + 2 + k}, v{tmp + 2 * h + k}, v{vZ}, vcc')
    mx(f'''
    v_or_b32 v{vSg}, v{vSg}, v{vT2}
    v_bfe_u32 v{vT1}, v{vI}, 1, 1
    v_lshrrev_b32 v{vT2}, 2, v{vI}
    v_lshl_add_u32 v{vT2}, s20, 2, v{vT2}
    v_mul_u32_u24 v{vPs}, 204800, v{vT2}
    v_lshl_add_u32 v{vPs}, v{vT1}, 6, v{vPs}
    v_lshl_add_u32 v{vPs}, v{vT0}, 5, v{vPs}
    v_sub_u32 v{vT3}, 32, v{vT2}
    v_cmp_eq_u32 vcc, 0, v{vT2}
    v_and_b32 v{tmp}, 1, v{vG}
    v_lshrrev_b32 v{tmp + 1}, 1, v{vG}
    v_cndmask_b32 v{vT3}, v{vT3}, 16, vcc
    v_cmp_eq_u32 vcc, 0, v{vT1}
    v_lshl_add_u32 v{vP4}, v{tmp}, 4, v{vPs}
    v_xor_b32 v{vT1}, v{vT1}, v{tmp + 1}
    v_cndmask_b32 v{vT2}, v{vT3}, v{vT2}, vcc
    v_lshl_add_u32 v{vP0}, v{vT1}, 15, v{vP4}
    v_lshl_add_u32 v{vP1}, v{vT1}, 14, v{vP4}
    v_lshl_add_u32 v{vP4}, v{tmp + 1}, 13, v{vP4}
    v_lshl_add_u32 v{vPs}, v{vG}, 3, v{vPs}
    v_lshlrev_b32 v{vGw}, 3, v{tmp}
    v_mad_u32_u24 v{vGw}, v{tmp + 1}, s54, v{vGw}
    v_lshlrev_b32 v{vS2}, 31, v{vT2}
    v_cvt_f32_u32 v{vT2}, v{vT2}
    v_mul_f32 v{vT2}, {flit(1 / 32)}, v{vT2}
    v_cvt_f32_u32 v{vT1}, v{vT0}
    v_fmaak_f32 v{vT1}, {flit(0.25)}, v{vT1}, {flit(0.25)}
    v_lshlrev_b32 v{vT3}, 2, v{vG}
    v_cvt_f32_u32 v{vD4}, v{vT3}
    v_fma_f32 v{tmp}, v{vT2}, v{vD4}, v{vT1}
    v_add_f32 v{tmp + 1}, v{tmp}, v{vT2}
    v_add_f32 v{tmp + 2}, v{tmp + 1}, v{vT2}
    v_add_f32 v{tmp + 3}, v{tmp + 2}, v{vT2}
    v_lshrrev_b32 v{vT1}, 16, v{vS2}
    v_or_b32 v{vS2}, v{vS2}, v{vT1}
    '''.replace('v_mad_u32_u24 v%d, v%d, s54' % (vGw, tmp + 1), 's_movk_i32 s54, 5120\n v_mad_u32_u24 v%d, v%d, s54' % (vGw, tmp + 1)))
    for rr in range(4):
        mx(f'v_sin_f32 v{tmp + 4 + rr}, v{tmp + rr}\n v_cos_f32 v{tmp + 8 + rr}, v{tmp + rr}')
    for k in range(2):
        mx(f'v_cvt_pk_bf16_f32 v{M0 + k}, v{tmp + 4 + 2 * k}, v{tmp + 5 + 2 * k}')
        mx(f'v_cvt_pk_bf16_f32 v{M1 + k}, -v{tmp + 8 + 2 * k}, -v{tmp + 9 + 2 * k}')
    for k in range(2):
        mx(f'v_xor_b32 v{M0 + 2 + k}, v{vS2}, v{M0 + k}\n v_xor_b32 v{M1 + 2 + k}, v{vS2}, v{M1 + k}')
    mx(f'''
    v_lshl_add_u32 v{vT0}, s20, 4, v{vT3}
    v_cvt_f32_u32 v{vD}, v{vT0}
    v_add_f32 v{vD + 1}, 1.0, v{vD}
    v_add_f32 v{vD + 2}, 2.0, v{vD}
    v_add_f32 v{vD + 3}, 1.0, v{vD + 2}
    v_add_u32 v{vMa}, s52, v{vL16}
    v_and_b32 v{vT0}, 7, v{vLane}
    v_lshl_add_u32 v{vT1}, s20, 3, v{vT0}
    s_movk_i32 s54, 160
    v_mad_u32_u24 v{vGw}, v{vT1}, s54, v{vGw}
    v_lshl_add_u32 v{vGw}, v{vHi}, 4, v{vGw}
    v_lshrrev_b32 v{vT1}, 2, v{vLane}
    v_mul_u32_u24 v{vGr}, 160, v{vT1}
    v_and_b32 v{vT2}, 3, v{vLane}
    v_lshl_add_u32 v{vGr}, v{vT2}, 3, v{vGr}
    v_lshl_add_u32 v{vT1}, v{vT0}, 7, s52
    v_lshlrev_b32 v{vT0}, 5, v{vT0}
    v_and_b32 v{vT0}, 0x40, v{vT0}
    v_mad_u32_u24 v{vT2}, v{vG}, 10, v{vHi}
    s_movk_i32 s54, {A_X >> 5}
    v_lshl_add_u32 v{vT2}, v{vT2}, 4, s54
    s_movk_i32 s54, 0x70
    s_movk_i32 s55, 0xfff
    ''')
    for m in range(5):
        if m:
            mx(f'v_add_u32 v{vT2}, 32, v{vT2}')
        mx(f'''
        v_xor_b32 v{vT3}, v{vT0}, v{vT2}
        v_lshlrev_b32 v{tmp}, 5, v{vT2}
        v_and_or_b32 v{vT3}, v{vT3}, s54, v{vT1}
        v_bfi_b32 v{vXa + m}, s55, v{vT3}, v{tmp}
        ''')
    e('s_mov_b32 s56, s30\n s_mov_b32 s57, s31\n s_mov_b32 s58, 256\n s_mov_b32 s59, 0x20000\n s_mov_b32 s51, 0x3f803f80')
    e.stamp(9, 'A')
    def body(sig3):
        tl = [(0, 0, 64, 8), (0, 4, 64, 8), (0, 16, 32, 8), (0, 20, 32, 8), (0, 32, 8, 4)]
        tl += [(4, 0, 16, 8), (4, 4, 16, 8), (4, 32, 8, 4)] if sig3 else []
        def touch_chip():
            e(f'''
            s_lshl_b32 s3, s2, 2
            s_add_u32 s3, s3, s20
            s_mul_i32 s3, s3, {17 * 128}
            v_lshlrev_b32 v{vT2}, 7, v{vLane}
            s_bfm_b64 exec, 17, 0
            buffer_load_dword a254, v{vT2}, s[24:27], s3 offen {CFG['tpol']}
            s_mov_b64 exec, -1
            ''')
        def task_loads():
            if CFG['touch'] == 1:
                touch_chip()
            if CFG['touch'] >= 2:
                e(f'''
                s_lshr_b32 s3, s2, 3
                s_lshl_b32 s3, s3, 2
                s_add_u32 s3, s3, s20
                s_mul_i32 s3, s3, {5 * 3456}
                s_and_b32 s33, s2, 1
                s_mul_i32 s33, s33, 1792
                s_add_u32 s3, s3, s33
                s_bfm_b64 exec, 56, 0
                buffer_load_dword a254, v{vPv}, s[24:27], s3 offen {CFG['tpol']}
                ''')
                if CFG['touch'] == 3:
                    e(f's_add_u32 s3, s3, {4 * 3456}\n s_bfm_b64 exec, 14, 0\n buffer_load_dword a253, v{vPv}, s[24:27], s3 offen {CFG["tpol"]}')
                e('s_mov_b64 exec, -1')
        def part(fe, d, c0, addr, off):
            for r in range(0, 4, 2):
                e(f'v_pk_mul_f32 {vr(tmp + r, 2)}, {vr(d + r, 2)}, {vr(fe, 2)} op_sel_hi:[1,0]')
            for r in range(4):
                e(f'v_cos_f32 v{tmp + 4 + r}, v{tmp + r}\n v_sin_f32 v{tmp + 8 + r}, v{tmp + r}')
            for k in range(4):
                e(f'v_cvt_pk_bf16_f32 v{c0 + k}, v{tmp + 4 + 2 * k}, v{tmp + 5 + 2 * k}')
            e(f'ds_write_b128 v{addr}, {vr(c0, 4)} offset:{off}')
        def lanepart(dst, dmid, dhi, add):
            e(f'''
            v_and_b32 v{dst}, 3, v{vI}
            v_mad_u32_u24 v{dst}, v{vMid}, {dmid}, v{dst}
            v_mad_u32_u24 v{dst}, v{vHi}, {dhi}, v{dst}
            v_lshl_add_u32 v{dst}, v{dst}, 3, {add}
            v_cvt_f32_u32 v{dst}, v{dst}
            v_mul_f32 v{dst}, {flit(1 / 640)}, v{dst}
            ''')
        def last_step(it):
            sub = [tl[min(4 * it + w, len(tl) - 1)] for w in range(4)]
            pk = lambda f: sum(f(t) << (8 * w) for w, t in enumerate(sub))
            e(f'''
            s_lshl_b32 s3, s20, 3
            s_lshr_b32 s42, {pk(lambda t: t[2])}, s3
            s_and_b32 s42, s42, 255
            s_lshr_b32 s43, {pk(lambda t: t[3])}, s3
            s_and_b32 s43, s43, 255
            s_lshr_b32 s44, {pk(lambda t: (t[0] + 8 * t[1]) // 4)}, s3
            s_and_b32 s44, s44, 255
            s_lshl_b32 s44, s44, 2
            s_add_u32 s44, s44, s41
            s_mul_i32 s45, s20, 5120
            ''')
            lanepart(vT0, 's43', 's42', 's44')
            e(f'v_add_u32 v{vMb}, s45, v{vL16}')
            part(vT0, vD4, TA + 8, vMb, A_MAT + 20480 * it + 4096)
        e(f'v_cvt_f32_u32 v{vD4}, v{vG}\n v_fmaak_f32 v{vD4}, 4.0, v{vD4}, {flit(64.0)}')
        e(f'v_add_f32 v{vD4 + 1}, 1.0, v{vD4}\n v_add_f32 v{vD4 + 2}, 2.0, v{vD4}\n v_add_f32 v{vD4 + 3}, 1.0, v{vD4 + 2}')
        last = None
        for a, (ko, base, dhi, dmid) in enumerate(tl):
            if (dhi, dmid) != last:
                last = (dhi, dmid)
                lanepart(vT1, dmid, dhi, 's41')
            e(f'v_add_f32 v{vT0}, {flit((ko + 8 * base) / 640)}, v{vT1}')
            part(vT0, vD, TA + 4 * (a % 2), vMa, A_MAT + 5120 * a)
            if a == 0 and sig3:
                l = e.lab('rdy')
                keep = list(e.vm)
                e(f's_cmp_ge_u32 s50, 8\n s_cbranch_scc1 {l}')
                e.wait(vm='zero')
                e(f's_lshl_b32 s3, s2, 2\n s_mov_b64 exec, 1\n buffer_store_dword v{vOne}, v{vZ}, s[56:59], s3 offen sc1\n s_mov_b64 exec, -1\n {l}:')
                e.vm = keep
            if a == CFG['ta'] and CFG['touch'] >= 2:
                touch_chip()
            if a == 1:
                last_step(0)
            if a == 3:
                l = e.lab('ls')
                if not sig3:
                    e(f's_cmp_lg_u32 s20, 0\n s_cbranch_scc1 {l}')
                last_step(1)
                e(f'{l}:')
            if a in (0, 4):
                e.stamp(10 + a // 4, 'A')
        if not sig3 and CFG['hoist'] >= 1:
            roles(e)
        if not sig3 and CFG['hoist'] >= 2:
            w1_setup(e)
        if CFG['touch'] >= 2:
            e(f'''
            v_mul_u32_u24 v{vT0}, 4682, v{vLane}
            v_lshrrev_b32 v{vT0}, 16, v{vT0}
            v_mul_u32_u24 v{vPv}, {3456 - 14 * 128}, v{vT0}
            v_lshl_add_u32 v{vPv}, v{vLane}, 7, v{vPv}
            ''')
        e(f'''
        v_sub_u32 v{vT0}, v{vI}, v{vG}
        v_mad_i32_i24 v{vT0}, v{vG}, -3, v{vT0}
        v_cmp_eq_u32 s[0:1], 0, v{vT0}
        v_cmp_eq_u32 s[62:63], 1, v{vT0}
        v_cmp_eq_u32 s[100:101], 2, v{vT0}
        v_cmp_eq_u32 s[28:29], 3, v{vT0}
        s_mov_b32 s48, {flit(1 / 640)}
        ''')
        for k in range(4):
            e(f'v_mov_b32 v{ONES + k}, s51')
        e('s_waitcnt lgkmcnt(0)\n s_barrier')
        e.stamp(2)
        e.wait(vm='x')
        e.stamp(3)
        order = [(m, h) for m in range(5) for h in range(2)]
        xr = lambda m, h: X + 8 * m + 4 * h
        for (m, h) in order:
            e(f'ds_read_b128 {vr(xr(m, h), 4)}, v{vXa + m} offset:{20480 * h}', tag=f'x{m}{h}')
        if CFG['tat'] == 1:
            task_loads()
        mats = [(f'ds_read_b128 {vr(20 * a + 4 * n, 4, "a")}, v{vL16} offset:{A_MAT + 5120 * a + 1024 * n}', f'm{a}')
                for a in range(len(tl)) for n in range(5)]
        for n, (m, h) in enumerate(order):
            x = xr(m, h)
            e.wait(lg=f'x{m}{h}')
            e(f'{MF} {vr(GR, 4)}, {vr(x, 4)}, {vr(x, 4)}, {vr(GR, 4) if n else 0}')
            e.take(mats, 1)
            e(f'{MF} {vr(SM, 4)}, {vr(ONES, 4)}, {vr(x, 4)}, {vr(SM, 4) if n else 0}')
            e.take(mats, 1 if n >= 3 else 0)
        e.stamp(4)
        fold = [(f'{MF} {vr(GA + 4 * m, 4)}, {vr(F + 4 * h, 4)}, {vr(xr(m, h), 4)}, {vr(GA + 4 * m, 4) if h else 0}', None) for h in range(2) for m in range(5)]
        e.take(fold, 3)
        e.take(mats, 8)
        mg = Mix(e, fold, 2)
        mg(f'''
        v_cndmask_b32 v{vQ}, 0, v{GR}, s[0:1]
        v_cndmask_b32 v{vQ}, v{vQ}, v{GR + 1}, s[62:63]
        v_cndmask_b32 v{vQ}, v{vQ}, v{GR + 2}, s[100:101]
        v_cndmask_b32 v{vQ}, v{vQ}, v{GR + 3}, s[28:29]
        v_add_f32_dpp v{vS}, v{SM}, v{SM} row_ror:8 row_mask:0xf bank_mask:0xf
        v_mov_b32 v{vS2}, v{vQ}
        v_mul_f32 v{vS}, {flit(1 / 640)}, v{vS}
        v_permlane32_swap_b32 v{vS2}, v{vQ}
        v_add_f32 v{vQ}, v{vS2}, v{vQ}
        v_mov_b32 v{vS2}, v{vQ}
        v_permlane16_swap_b32 v{vS2}, v{vQ}
        v_add_f32 v{vQ}, v{vS2}, v{vQ}
        v_mul_f32 v{vS2}, v{vS}, v{vS}
        v_add_f32_dpp v{vQ}, v{vQ}, v{vQ} row_ror:8 row_mask:0xf bank_mask:0xf
        v_fma_f32 v{vQ}, v{vQ}, s48, -v{vS2}
        v_max_f32 v{vQ}, 0, v{vQ}
        v_add_f32 v{vQ}, {flit(1e-5)}, v{vQ}
        v_rsq_f32 v{vQ}, v{vQ}
        ''')
        e.take(fold)
        if sig3:
            e(f'v_cmp_gt_u32 vcc, 32, v{vLane}')
            round_bf16(e, vS, vS2)
            e(f'v_mul_f32 v{vS}, {flit(-8.0)}, v{vS}\n v_mul_f32 v{vS}, v{vS}, v{vQ}\n v_cndmask_b32 v{vS}, 0, v{vS}, vcc')
        for m in range(5):
            g = GA + 4 * m
            for k in range(2):
                if sig3:
                    e(f'v_pk_fma_f32 {vr(g + 2 * k, 2)}, {vr(g + 2 * k, 2)}, {vr(vS, 2)}, {vr(vS, 2)} op_sel:[0,1,0] op_sel_hi:[1,1,0]')
                else:
                    e(f'v_pk_mul_f32 {vr(g + 2 * k, 2)}, {vr(g + 2 * k, 2)}, {vr(vS, 2)} op_sel:[0,1] op_sel_hi:[1,1]')
            e(f'v_cvt_pk_bf16_f32 v{g}, v{g}, v{g + 1}\n v_cvt_pk_bf16_f32 v{g + 1}, v{g + 2}, v{g + 3}')
            e(f'ds_write_b64 v{vGw}, {vr(g, 2)} offset:{A_G + 32 * m}', tag='gw')
        e.wait(lg='gw')
        e('s_barrier')
        e.stamp(5)
        for tau in range(5):
            for c in range(2):
                b = AF + 8 * tau + 4 * c
                for u in range(2):
                    e(f'ds_read_b64_tr_b16 {vr(b + 2 * u, 2)}, v{vGr} offset:{A_G + 5120 * c + 2560 * u + 32 * tau}', tag=f'g{tau}{c}')
        if CFG['tat'] == 2:
            task_loads()
        for tau in range(5):
            for c in range(2):
                b = AF + 8 * tau + 4 * c
                e.wait(lg=f'g{tau}{c}')
                if sig3:
                    e(f'{MF} {vr(TA + 20 * c + 4 * tau, 4)}, {vr(b, 4)}, {vr(M0, 4)}, 0')
                else:
                    t = vr(TA + 4 * tau, 4)
                    e(f'{MF} {t}, {vr(b, 4)}, {vr(M1 if c else M0, 4)}, {t if c else 0}')
        e(f's_lshl_b32 s42, s21, 7\n s_add_u32 s42, s42, {VB}\n s_mul_i32 s3, s41, 40960\n s_add_u32 s42, s42, s3')
        def pack(s):
            out = []
            for tau in range(5):
                t = TA + 20 * s + 4 * tau
                o = TP + 20 * s + 4 * tau
                for k in range(2):
                    out.append((f'v_cvt_pk_bf16_f32 v{o + k}, v{t + 2 * k}, v{t + 2 * k + 1}', None))
                if tau:
                    out += xors
                xors = [(f'v_xor_b32_dpp v{o + 2 + k}, v{o + k}, v{vSg} quad_perm:[1,0,3,2] row_mask:0xf bank_mask:0xf', None) for k in range(2)]
            return out + xors
        p0 = pack(0)
        e.take(p0, 6)
        e.stamp(6)
        groups = [((0, 1), 0, vP0, 0), ((2, 3), 0, vP1, 8192), ((4,), 0, vPs, 16384)]
        if sig3:
            groups += [((5, 6), 1, vP4, 4 * 40960), ((7,), 1, vPs, 4 * 40960 + 16384)]
        def finish(g):
            tls, s, va, so = g
            o = VA + 4 * tls[0]
            out = []
            for n, a in enumerate(tls):
                for k in range(2):
                    out.append((f'v_cvt_pk_bf16_f32 v{o + 2 * n + k}, v{VA + 4 * a + 2 * k}, v{VA + 4 * a + 2 * k + 1}', None))
            out.append((f's_add_u32 s43, s42, {so}\n buffer_store_dwordx{2 * len(tls)} {vr(o, 2 * len(tls))}, v{va}, s[8:11], s43 offen {CFG["vpol"]}', 'vst'))
            if CFG['nov']: out.pop()
            return out
        e(f'v_and_b32 v{vZ}, 7, v{vLane}\n v_lshlrev_b32 v{vZ}, 2, v{vZ}\n buffer_load_dword v{vRdy}, v{vZ}, s[56:59], 0 offen sc1', tag='rdy')
        fill = p0 + (pack(1) if sig3 else [])
        for gi, g in enumerate(groups):
            seq = [(a, n) for n in range(5) for a in g[0]]
            for k, (a, n) in enumerate(seq):
                d = vr(VA + 4 * a, 4)
                while any(t == f'm{a}' for _, t in mats):
                    e.take(mats, 1)
                e.wait(lg=f'm{a}')
                e(f'{MF} {d}, {vr(20 * a + 4 * n, 4, "a")}, {vr(TP + 20 * g[1] + 4 * n, 4)}, {d if n else 0}')
                if k == 2 and gi > 0:
                    fill = finish(groups[gi - 1]) + fill
                if gi == 0 and k < 7:
                    e.take(fill, 2)
                elif fill:
                    e.take(fill, 1); e.take(mats, 1)
                else:
                    e.take(mats, 2)
            if gi == 2:
                e.take(fill)
        e.take(fill + finish(groups[-1]))
        e.stamp(7)
        leave_a(e, sig3)
    e('s_cmp_eq_u32 s22, 3\n s_cbranch_scc1 LA_sig3')
    vm0, lg0 = list(e.vm), list(e.lg)
    body(False)
    e('s_branch LA_end\n LA_sig3:')
    e.vm, e.lg = list(vm0), list(lg0)
    body(True)
    e('LA_end:')

W2V, vL16x = 176, 10
def w2reg(n, a):
    if n < 4:
        return vr(160 + 20 * n + 4 * a, 4, 'a')
    if n < 8:
        return vr(W2V + 20 * (n - 4) + 4 * a, 4)
    r = 48 + 20 * (n - 8) + 4 * a
    return vr(r, 4, 'a') if r < 160 else vr(132 + r - 160, 4)
def ringreg(n, rt):
    if n >= 10:
        return vr(160 + 16 * (n - 10) + 4 * rt, 4, 'a')
    s = n % 4
    return vr(240 + 4 * rt, 4, 'a') if s == 0 else vr(16 * (s - 1) + 4 * rt, 4, 'a')
def w2_loads(n):
    return [((f's_add_u32 s62, s46, {5120 * n + 4096 * (a // 4)}\n' if a % 4 == 0 else '') +
             f'buffer_load_dwordx4 {w2reg(n, a)}, v{vOob if CFG["skipw2"] else vL16x if n in (8, 9) else vL16}, s[8:11], s62 offen offset:{1024 * (a % 4)} {LD}', f'w2_{n}') for a in range(5)]

vPre2, vBarA, vPk2, vW1 = 11, 12, 15, 160
def w1_step(i):
    head = (f's_add_u32 s53, s60, {i}\n s_and_b32 s53, s53, 3\n' if i < 4 and CFG['rot'] else f's_mov_b32 s53, {i}\n') + \
        f's_mul_i32 s33, s53, {4 * 32 * 3456}\n s_add_u32 s33, s33, s32\n s_mul_i32 s53, s53, {4 * W_K}\n s_add_u32 s53, s53, s55\n'
    return [((head if n == 0 else '') +
             f's_add_u32 m0, s53, {1024 * n}\n buffer_load_dwordx4 v{vOob if CFG["skipw1"] else vW1 + n}, s[24:27], s33 offen {CFG["w1pol"]} lds', 'w1') for n in range(7)]

def guarded(e, cond, items):
    l = e.lab('opt')
    kv, kl, tot = list(e.vm), list(e.lg), e.total
    e(f'{cond}\n s_cbranch_scc0 {l}')
    for t in items:
        e(t[0] if isinstance(t, tuple) else t)
    e(f'{l}:')
    e.vm, e.lg, e.total = kv, kl, tot

def leave_a(e, sig3):
    vRdy, vZ = 225, 233
    w0 = 0 if sig3 else CFG['w0']
    if sig3 or CFG['hoist'] < 1:
        roles(e)
    if not sig3:
        guarded(e, 's_cmp_lt_u32 s37, 5',
                [f's_add_u32 m0, s53, {1024 * n}\n buffer_load_dwordx4 v{vXr}, s[4:7], s35 offen {CFG["rpol"]} lds\n' +
                 (f's_add_u32 s35, s35, {4 * 40960}\n v_xor_b32 v{vXr}, {64 if n % 2 == 0 else 192}, v{vXr}' if n < 3 else '') for n in range(4)])
    task_start(e, 0)
    if sig3:
        e(f's_mov_b32 s43, {OOB}')
    else:
        task_start(e, 1)
        if CFG['hoist'] < 2:
            w1_setup(e)
        e('s_barrier')
        e.take([l for i in range(4) for l in w1_step(i)], w0)
    e(f"""
    s_bfe_u32 s3, s2, 0x40003
    v_lshl_add_u32 v{vBarA}, v{vLane}, 4, s3
    v_lshlrev_b32 v{vBarA}, 8, v{vBarA}
    s_lshl_b32 s3, s44, 2
    s_add_u32 s3, s3, s20
    s_add_u32 s3, s3, {C_PRE2}
    s_lshl_b32 s3, s3, 8
    v_mov_b32 v{vPre2}, s3
    """)
    e(f's_waitcnt vmcnt({w0 + 5})')
    if not sig3:
        guarded(e, 's_cmp_lt_u32 s37, 5', [f's_waitcnt vmcnt({w0 + 4})'])
    guarded(e, f's_cmp_lt_u32 s37, 5\n s_cselect_b32 s3, 0, s41\n s_cmp_eq_u32 s3, {OOB}', [f's_waitcnt vmcnt({w0})'])
    e.stamp(12, 'A')
    e.vm = []
    e.confirm(vRdy, vZ, 1, 'rdy', 's[56:59]', mask='0xff')
    e('s_barrier')
    guarded(e, 's_cmp_eq_u32 s20, 0', [f's_mov_b64 exec, 0xff\n buffer_atomic_add v{vOne}, v{vBarA}, s[8:11], 0 offen sc1\n s_mov_b64 exec, -1'])
    e.stamp(8)
    if sig3:
        w1_setup(e)
        e.take([l for i in range(4) for l in w1_step(i)], CFG['w0'])

def task_start(e, it):
    inv_lo = [IDX_LO.index(k) for k in range(14)]
    inv_hi = [IDX_HI.index(k) if k in IDX_HI else 15 for k in range(14)]
    l = e.lab('notask')
    kv, tot = list(e.vm), e.total
    d, c = f's{40 + 2 * it}', f's{41 + 2 * it}'
    e(f"""
    s_mov_b32 {c}, {OOB}
    s_lshr_b32 s35, s2, 1
    s_add_u32 s35, s35, {32 + 32 * it}
    s_cmp_lt_u32 s2, 64
    s_cselect_b32 s35, {'s2' if it == 0 else 112}, s35
    s_cmp_lt_u32 s37, 5
    s_cselect_b32 s35, 112, s35
    s_cmp_ge_u32 s35, 112
    s_cbranch_scc1 {l}
    s_bfe_u32 s62, s35, 0x20001
    s_lshr_b32 s63, s35, 3
    s_and_b32 s35, s35, 1
    s_mov_b32 s0, {nib(inv_lo) & 0xffffffff}
    s_mov_b32 s1, {nib(inv_lo) >> 32}
    s_mov_b32 s28, {nib(inv_hi) & 0xffffffff}
    s_mov_b32 s29, {nib(inv_hi) >> 32}
    s_cmp_lt_u32 s62, 3
    s_cselect_b64 s[0:1], s[0:1], s[28:29]
    s_lshl_b32 s3, s63, 2
    s_lshr_b64 s[0:1], s[0:1], s3
    s_and_b32 s0, s0, 15
    s_cmp_eq_u32 s0, 15
    s_cbranch_scc1 {l}
    s_mul_i32 s34, s62, 14
    s_add_u32 s0, s0, s34
    s_lshl_b32 s0, s0, 2
    s_add_u32 s0, s0, s20
    s_mul_i32 s33, s0, {8 * 1280}
    s_mul_i32 s3, s35, 640
    s_add_u32 s33, s33, s3
    s_lshl_b32 s35, s35, 2
    s_add_u32 s35, s35, s20
    s_mul_i32 {d}, s35, 56
    s_add_u32 {d}, {d}, s34
    s_add_u32 {d}, {d}, s63
    s_mul_i32 {d}, {d}, 5120
    s_add_u32 {d}, {d}, {W2B}
    s_lshl_b32 {c}, s35, 2
    s_add_u32 {c}, {c}, s62
    s_add_u32 {c}, {c}, {C_PRE2}
    s_lshl_b32 {c}, {c}, 8
    s_mul_i32 s34, s20, 5120
    s_add_u32 s34, s34, {T_STG + 20480 * it}
    v_lshrrev_b32 v{vT0}, 3, v{vLane}
    v_mul_u32_u24 v{vT0}, 1280, v{vT0}
    v_and_b32 v{vT2}, 7, v{vLane}
    v_lshl_add_u32 v{vT0}, v{vT2}, 4, v{vT0}
    """)
    for n in range(5):
        e(f's_add_u32 m0, s34, {896 * n}\n buffer_load_dwordx4 v{vT0}, s[12:15], s33 offen offset:{128 * n} {CFG["wpol"]} lds')
    e(f'{l}:')
    e.vm, e.total = kv, tot

def task_finish(e, loads):
    vPa, PR = 16, 176
    e(f"""
    v_bfe_u32 v{vT2}, v{vLane}, 2, 3
    v_lshlrev_b32 v{vT2}, 7, v{vT2}
    v_lshrrev_b32 v{vT3}, 5, v{vLane}
    s_movk_i32 s3, 5120
    v_mad_u32_u24 v{vT2}, v{vT3}, s3, v{vT2}
    v_add_u32 v{vT2}, {T_STG}, v{vT2}
    s_mul_i32 s3, s20, 10
    v_and_b32 v{vT3}, 3, v{vLane}
    v_add_u32 v{vPa}, s3, v{vT3}
    v_add_u32 v{vPa + 1}, 4, v{vPa}
    v_bfe_u32 v{vT3}, v{vLane}, 1, 1
    v_add3_u32 v{vPa + 2}, s3, v{vT3}, 8
    """)
    for k in range(3):
        e(f"""
        v_lshrrev_b32 v{vT3}, 3, v{vPa + k}
        v_and_b32 v{vPa + k}, 7, v{vPa + k}
        v_lshl_add_u32 v{vPa + k}, v{vPa + k}, 4, v{vT2}
        v_lshl_add_u32 v{vPa + k}, v{vT3}, 10, v{vPa + k}
        """)
    e(f'v_and_b32 v{vT3}, 1, v{vLane}\n v_lshl_add_u32 v{vPa + 2}, v{vT3}, 3, v{vPa + 2}\n s_waitcnt vmcnt({CFG["w0"]})\n s_barrier')
    e.stamp(9)
    for it in range(2):
        d = f's{40 + 2 * it}'
        items = [f'ds_read_b64_tr_b16 {vr(PR + 4 * a + 2 * v, 2)}, v{vPa + (a >> 1)} offset:{20480 * it + 8 * (a & 1) + 10240 * v}' for a in range(5) for v in range(2)]
        items += ['s_waitcnt lgkmcnt(0)']
        items += [f'buffer_store_dwordx4 {vr(PR + 4 * a, 4)}, v{vL16}, s[8:11], {d} offen offset:{1024 * a} {ST}' for a in range(4)]
        items += [f's_add_u32 {d}, {d}, 4096\n buffer_store_dwordx4 {vr(PR + 16, 4)}, v{vL16}, s[8:11], {d} offen {ST}\n s_nop 1']
        guarded(e, f's_cmp_lg_u32 s{41 + 2 * it}, {OOB}', items)
    e.stamp(10)
    e.take(loads, CFG['w1a'])
    e(f's_waitcnt vmcnt({CFG["w1a"]})\n v_mov_b32 v{vT2}, s41\n v_mov_b32 v{vT3}, s43')
    e.arrive(vT2, 1)
    e.arrive(vT3, 1)
    e.stamp(11)

def w1_finish(e, loads):
    e.take(loads)
    e('s_barrier')
    guarded(e, 's_cmp_lt_u32 s20, 2', w1_step(4))

def q_of_half(e, dst, half):
    e(f'''
    s_sub_u32 s3, 32, s60
    s_cmp_eq_u32 s60, 0
    s_cselect_b32 s3, 16, s3
    s_cmp_eq_u32 {half}, 0
    s_cselect_b32 {dst}, s60, s3
    ''')

def phase_b(e, w1l, w2l):
    aD, aM, a0, a4, vMk, vHo, vSo, vV1, vV0, vV4, vBar, vMk4 = range(16, 28)
    XR, AC, W, WM, W4, FB, tmp, H = 28, 44, 76, 92, 108, 124, 40, 124
    e(f'''
    v_lshlrev_b32 v{vT1}, 2, v{vG}
    v_xor_b32 v{vT1}, v{vT1}, v{vI}
    v_lshlrev_b32 v{vT1}, 4, v{vT1}
    v_lshl_add_u32 v{vT1}, v{vI}, 8, v{vT1}
    s_lshl_b32 s3, s20, 12
    s_add_u32 s3, s3, {X_STG}
    v_add_u32 v{vT1}, s3, v{vT1}
    ''')
    e(f'v_mov_b32 v{vBar}, v{vT1}')
    tot0 = e.total
    e(f'v_lshl_add_u32 v{vT0}, s20, 4, v{vI}\n v_lshl_add_u32 v{vT0}, v{vT0}, 5, s39')
    e(f'''
    v_cvt_f32_u32 v{vT0}, v{vT0}
    v_mul_f32 v{vT0}, {flit(1 / 2048)}, v{vT0}
    v_and_b32 v{vT1}, 1, v{vG}
    v_lshlrev_b32 v{vMk}, 31, v{vT1}
    v_lshrrev_b32 v{vT2}, 16, v{vMk}
    v_or_b32 v{vMk}, v{vMk}, v{vT2}
    v_lshrrev_b32 v{vT2}, 5, v{vLane}
    v_lshlrev_b32 v{vSo}, 6, v{vI}
    v_lshl_add_u32 v{vSo}, v{vT2}, 2, v{vSo}
    v_lshlrev_b32 v{vT2}, 3, v{vT2}
    v_cvt_f32_u32 v{FB}, v{vT2}
    v_bfe_u32 v{vT3}, v{vLane}, 2, 2
    v_add_u32 v{vT2}, v{vT2}, v{vT3}
    v_lshlrev_b32 v{a0}, 5, v{vT1}
    v_add_u32 v{a0}, {V_STG}, v{a0}
    v_lshl_add_u32 v{aD}, v{vT2}, 7, v{a0}
    v_lshl_add_u32 v{a0}, v{vT2}, 6, v{a0}
    v_lshrrev_b32 v{vT3}, 1, v{vT3}
    v_xor_b32 v{vT2}, 1, v{vT3}
    v_lshl_add_u32 v{aM}, v{vT2}, 6, v{aD}
    v_lshl_add_u32 v{aD}, v{vT3}, 6, v{aD}
    v_and_b32 v{vT2}, 3, v{vLane}
    v_xor_b32 v{vT3}, 3, v{vT2}
    v_lshl_add_u32 v{aD}, v{vT2}, 3, v{aD}
    v_lshl_add_u32 v{aM}, v{vT3}, 3, v{aM}
    v_lshl_add_u32 v{a4}, v{vT3}, 3, v{a0}
    v_lshl_add_u32 v{a0}, v{vT2}, 3, v{a0}
    v_cvt_f32_u32 v{vT1}, v{vT1}
    v_sub_f32 v{vT1}, 1.0, v{vT1}
    v_mul_f32 v{vT1}, {flit(0.25)}, v{vT1}
    v_fma_f32 v{vT1}, v{vT0}, v{FB}, v{vT1}
    s_cmp_le_u32 s38, 2
    s_cselect_b32 s3, 0, -1
    s_cselect_b64 s[40:41], -1, 0
    v_and_b32 v{vMk4}, s3, v{vMk}
    v_cndmask_b32 v{a4}, v{a4}, v{a0}, s[40:41]
    ''')
    left = [w1l.pop() for _ in range(CFG['w1left'])][::-1]
    mx = Mix(e, w1l, CFG['bmix'])
    for ks in range(4):
        for n in range(8):
            mx(f'v_fmamk_f32 v{FB + n}, v{vT0}, {flit(16 * ks + n)}, v{vT1}')
        for n in range(8):
            mx(f'v_sin_f32 v{FB + n}, v{FB + n}')
        for k in range(4):
            mx(f'v_cvt_pk_bf16_f32 v{W + 4 * ks + k}, v{FB + 2 * k}, v{FB + 2 * k + 1}')
    for k in range(16):
        mx(f'v_xor_b32 v{WM + k}, v{vMk}, v{W + k}\n v_xor_b32 v{W4 + k}, v{vMk4}, v{W + k}')
    e(f's_waitcnt vmcnt({e.total - tot0 + CFG["w0"]})')
    for r in range(4):
        e((f'v_xor_b32 v{vBar}, {16 if r % 2 else 48}, v{vBar}\n' if r else '') + f'ds_read_b128 {vr(XR + 4 * r, 4)}, v{vBar}', tag='xr')
    e.wait(lg='xr')
    for r in range(4):
        for k in range(8):
            d = AC + 4 * k + (r if k <= 4 else 3 - r)
            x = XR + 4 * r + k // 2
            mx(f'v_lshlrev_b32 v{d}, 16, v{x}' if k % 2 == 0 else f'v_and_b32 v{d}, 0xffff0000, v{x}')
    e(f'''
    s_lshl_b32 s40, s37, 13
    s_lshl_b32 s3, s36, 6
    s_add_u32 s40, s40, s3
    s_xor_b32 s41, s40, 64
    s_sub_u32 s42, 4, s37
    s_lshl_b32 s42, s42, 13
    s_add_u32 s42, s42, s3
    s_xor_b32 s43, s3, 64
    s_cmp_eq_u32 s60, 0
    s_cselect_b32 s41, s42, s41
    s_cselect_b32 s42, s3, s43
    s_sub_u32 s43, 4, s38
    s_cmp_le_u32 s38, 2
    s_cselect_b32 s42, s3, s42
    s_cselect_b32 s43, s38, s43
    s_lshl_b32 s43, s43, 13
    s_add_u32 s42, s42, s43
    v_lshrrev_b32 v{vT0}, 3, v0
    v_and_b32 v{vT1}, 3, v0
    v_lshlrev_b32 v{vT1}, 4, v{vT1}
    v_lshl_add_u32 v{vV1}, v{vT0}, 7, v{vT1}
    v_lshrrev_b32 v{vT2}, 2, v0
    v_lshl_add_u32 v{vV0}, v{vT2}, 7, v{vT1}
    v_lshrrev_b32 v{vT0}, 1, v{vT0}
    v_xor_b32 v{vT0}, v{vT0}, v{vT2}
    v_and_b32 v{vT0}, 1, v{vT0}
    v_cmp_eq_u32 vcc, 0, v{vT0}
    v_mov_b32 v{vT1}, s41
    v_mov_b32 v{vT2}, s40
    v_cndmask_b32 v{vT1}, v{vT1}, v{vT2}, vcc
    v_add_u32 v{vV1}, v{vV1}, v{vT1}
    v_add_u32 v{vV4}, s42, v{vV0}
    v_add_u32 v{vV0}, s40, v{vV0}
    s_mul_i32 s40, s60, 204800
    s_add_u32 s40, s40, {VB}
    s_add_u32 s41, s52, {V_STG}
    v_lshlrev_b32 v{vMk}, 4, v0
    v_add_u32 v{vMk}, {V_STG}, v{vMk}
    s_lshl_b32 s3, s36, 2
    s_lshl_b32 s42, s60, 3
    s_add_u32 s42, s42, s3
    s_add_u32 s42, s42, s20
    s_lshr_b32 s45, s42, 1
    s_add_u32 s45, s45, {C_BC}
    s_lshl_b32 s45, s45, 8
    s_lshl_b32 s43, s42, 7
    s_add_u32 s43, s43, s38
    s_lshl_b32 s43, s43, 3
    s_add_u32 s43, s43, {SB}
    s_cmp_eq_u32 s38, 4
    s_cselect_b32 s34, 0xffff0000, 0
    s_mov_b32 s35, s34
    v_cndmask_b32 v{vT0}, 0, 8, s[34:35]
    v_add_u32 v{vSo}, v{vSo}, v{vT0}
    s_mul_i32 s42, s42, 20480
    s_lshl_b32 s3, s38, 12
    s_add_u32 s42, s42, s3
    s_add_u32 s42, s42, {HB}
    v_lshlrev_b32 v{vHo}, 4, v{vI}
    v_lshl_add_u32 v{vHo}, v{vG}, 10, v{vHo}
    s_and_b32 s3, s2, 7
    s_lshl_b32 s3, s3, 4
    v_add_u32 v{vBar}, s3, v{vLane}
    v_lshlrev_b32 v{vBar}, 8, v{vBar}
    ''')
    def swap4():
        l = e.lab('sw')
        e(f's_cmp_le_u32 s38, 2\n s_cbranch_scc1 {l}')
        e(f'v_swap_b32 v{AC + 16}, v{AC + 19}\n v_swap_b32 v{AC + 17}, v{AC + 18}\n {l}:')
    swap4()
    setup_c(e)
    e.take(w1l)
    e.stamp(9)
    e('s_cmp_lg_u32 s20, 0\n s_cbranch_scc1 LB_nopoll')
    keep = list(e.vm)
    e.spin(vT0, vBar, 16, '0xffff')
    e('LB_nopoll:\n s_barrier')
    e.vm = keep
    e.stamp(10)
    for va, src, dst in [(vV0, 0, 0), (vV1, 40960, 4096), (vV1, 45056, 8192), (vV1, 81920, 12288), (vV1, 86016, 16384)]:
        e(f's_add_u32 s3, s40, {src}\n s_add_u32 m0, s41, {dst}')
        e(f'buffer_load_dwordx4 v{va}, s[8:11], s3 offen {LD} lds', tag='V')
    for k, (va, src) in enumerate([(vV1, 122880), (vV1, 126976), (vV4, 163840)]):
        e(f's_add_u32 s3, s40, {src}\n buffer_load_dwordx4 {vr(XR + 4 * k, 4)}, v{va}, s[8:11], s3 offen {LD}', tag='V2')
    pend = left
    assert CFG['q1'] + CFG['q2'] <= len(left)
    def take(k):
        while k > 0 and pend:
            if pend[0][0] == 'PRE2':
                pend.pop(0); e.confirm(vPk2, vPre2, 's47', 'pk2')
            else:
                e.take(pend, 1); k -= 1
    take(CFG['q1'])
    e.wait(vm='V')
    e('s_barrier')
    e.stamp(11)
    e.stamp(1, 'F')
    seq = [(b, ks) for b in (0, 1, 7, 2, 6, 3, 5, 4) for ks in range(4)]
    NB = 7
    def rd(n):
        b, ks = seq[n]
        f = FB + 4 * (n % 8)
        for u in range(2):
            if b in (0, 4):
                e(f'ds_read_b64_tr_b16 {vr(f + 2 * u, 2)}, v{a0 if b == 0 else a4} offset:{1024 * ks + 256 * u}', tag=f'f{n}')
            else:
                c = b if b < 4 else 8 - b
                e(f'ds_read_b64_tr_b16 {vr(f + 2 * u, 2)}, v{aD if b < 4 else aM} offset:{(12288 if c == 2 else 4096) + 2048 * ks + 512 * u}', tag=f'f{n}')
    for n in range(NB):
        rd(n)
    nxt = NB
    for n, (b, ks) in enumerate(seq):
        if n in (1, 12, 15, 20):
            e.stamp({1: 2, 12: 3, 15: 4, 20: 5}[n], 'F')
        if n == 12:
            e.wait(vm='V2')
            e('s_barrier')
            for k, o in enumerate((4096, 8192, 0)):
                e(f'ds_write_b128 v{vMk}, {vr(XR + 4 * k, 4)} offset:{o}', tag='vw')
        if n == 15:
            e.wait(lg='vw')
            e('s_barrier')
        e.wait(lg=f'f{n}')
        w = W if b < 4 else (W4 if b == 4 else WM)
        e(f'{MF} {vr(AC + 4 * b, 4)}, {vr(FB + 4 * (n % 8), 4)}, {vr(w + 4 * ks, 4)}, {vr(AC + 4 * b, 4)}')
        while nxt <= n + NB and nxt < len(seq) and (nxt < 20 or n >= 15):
            rd(nxt); nxt += 1
        if n % 3 == 1 and n // 3 < CFG['q2']:
            take(1)
        if n == CFG['pk2at']:
            e.peek(vPk2, vPre2, 'pk2')
    while any(t == 'w1' for x, t in pend):
        take(1)
    e.stamp(6, 'F')
    e(f'v_mov_b32 v{tmp}, 0\n v_mov_b32 v{tmp + 1}, 0\n v_mov_b32 v{tmp + 2}, 0\n v_mov_b32 v{tmp + 3}, 0\n s_nop 3')
    swap4()
    for r in range(4):
        for k in range(4):
            lo = AC + 8 * k + (r if 2 * k <= 4 else 3 - r)
            hi = AC + 8 * k + 4 + (r if 2 * k + 1 <= 4 else 3 - r)
            e(f'v_cvt_pk_bf16_f32 v{H + 4 * r + k}, v{lo}, v{hi}')
        e(f'buffer_store_dwordx4 {vr(H + 4 * r, 4)}, v{vHo}, s[8:11], s42 offen offset:{256 * r} {ST}', tag='hst')
        for k in range(4 * r, 4 * r + 4):
            s, q = tmp + 2 * (k % 2), tmp + 2 * (k % 2) + 1
            e(f'v_dot2_f32_bf16 v{s}, v{H + k}, s51, v{s}\n v_dot2_f32_bf16 v{q}, v{H + k}, v{H + k}, v{q}')
    e.stamp(7, 'F')
    e(f'''
    v_add_f32 v{tmp}, v{tmp}, v{tmp + 2}
    v_add_f32 v{tmp + 1}, v{tmp + 1}, v{tmp + 3}
    v_permlane32_swap_b32 v{tmp}, v{tmp + 1}
    v_add_f32 v{tmp}, v{tmp}, v{tmp + 1}
    v_mov_b32 v{tmp + 1}, v{tmp}
    v_permlane16_swap_b32 v{tmp}, v{tmp + 1}
    v_add_f32 v{tmp}, v{tmp}, v{tmp + 1}
    v_mov_b32 v{vBar}, s45
    v_cndmask_b32 v{tmp}, v{tmp}, 0, s[34:35]
    ''')
    e(f'buffer_store_dword v{tmp}, v{vSo}, s[8:11], s43 offen {ST}', tag='hst')
    e.stamp(12)
    e.stamp(7, 'E')
    e.stamp(8, 'F')
    e.wait(vm='w1')
    e('s_barrier')
    e.stamp(8, 'E')
    def arrive():
        e.wait(vm='hst')
        e.arrive(vBar, 1)
        e.confirm(vPk2, vPre2, 's47', 'pk2')
    return w2l, arrive

CS = 16
vWp, vWs, vBC, vSt, vSa, vCs = 168, 171, 174, 175, 167, 156
WIN = 61440 - 61440 % W_K
def w1_frag(dst, slot, k, tag):
    b, o = divmod(W_K * k + (32 * slot if slot < 6 else 0), WIN)
    v = (vWp if slot < 6 else vWs) + b
    return [(f'ds_read_b64_tr_b16 {vr(dst + 2 * h, 2)}, v{v} offset:{o + 1792 * h}', tag) for h in range(2)]

def setup_c(e):
    e(f"""
    v_lshrrev_b32 v{vT0}, 5, v{vLane}
    v_bfe_u32 v{vT1}, v{vLane}, 2, 3
    v_lshl_add_u32 v{vT0}, v{vT0}, 4, v{vT1}
    v_mul_u32_u24 v{vT0}, 224, v{vT0}
    v_and_b32 v{vT1}, 3, v{vLane}
    v_lshl_add_u32 v{vT0}, v{vT1}, 3, v{vT0}
    s_lshl_b32 s3, s31, 5
    v_add_u32 v{vWp}, s3, v{vT0}
    v_add_u32 v{vWp + 1}, {WIN}, v{vWp}
    v_add_u32 v{vWp + 2}, {2 * WIN}, v{vWp}
    s_cmp_eq_u32 s31, 0
    s_cselect_b32 s3, 192, 0
    v_add_u32 v{vWs}, s3, v{vT0}
    v_add_u32 v{vWs + 1}, {WIN}, v{vWs}
    v_add_u32 v{vWs + 2}, {2 * WIN}, v{vWs}
    s_lshl_b32 s3, s20, 6
    s_cmp_eq_u32 s20, 3
    s_cselect_b64 vcc, -1, 0
    s_cselect_b32 s0, {OOB}, 0
    v_or_b32 v{vL16x}, s0, v{vL16}
    """)
    for b in range(3):
        e(f'v_add_u32 v{vCs + b}, s3, v{vWp + b}\n v_cndmask_b32 v{vCs + b}, v{vCs + b}, v{vWs + b}, vcc')
    e(f"""
    v_lshlrev_b32 v{vSa}, 6, v{vI}
    v_lshl_add_u32 v{vSa}, v{vG}, 4, v{vSa}
    v_cmp_le_u32 vcc, 48, v{vLane}
    v_cndmask_b32 v{vT0}, 0, v{vOne}, vcc
    v_lshl_or_b32 v{vSa}, v{vT0}, 31, v{vSa}
    s_lshl_b32 s0, s60, 3
    s_lshl_b32 s3, s20, 1
    s_add_u32 s0, s0, s3
    s_lshl_b32 s23, s0, 10
    s_add_u32 s23, s23, {SB}
    s_mul_i32 s21, s0, 20480
    s_add_u32 s21, s21, {HB}
    s_add_u32 s22, s21, 20480
    s_lshr_b32 s3, s0, 1
    s_add_u32 s3, s3, {C_BC}
    s_lshl_b32 s3, s3, 8
    v_mov_b32 v{vBC}, s3
    s_lshr_b32 s1, s61, 2
    s_cmp_lt_u32 s1, 3
    s_cselect_b32 s3, 0, {OOB}
    v_or_b32 v{vSt}, s3, v{vL16}
    s_and_b32 s48, s0, 0xfc
    s_add_u32 s48, s48, s1
    s_lshl_b32 s48, s48, 1
    s_add_u32 s48, s48, {C_CD}
    s_lshl_b32 s48, s48, 8
    s_mul_i32 s1, s1, 14
    s_mul_i32 s0, s0, 56
    s_add_u32 s0, s0, s1
    s_lshl_b32 s0, s0, 10
    s_add_u32 s0, s0, {H1B}
    s_and_b32 s1, s61, 3
    s_lshl_b32 s12, s1, 11
    s_add_u32 s12, s12, s0
    s_add_u32 s13, s12, 1024
    s_add_u32 s14, s1, 10
    s_lshl_b32 s14, s14, 10
    s_add_u32 s14, s14, s0
    s_lshr_b32 s15, s1, 1
    s_add_u32 s15, s15, 8
    s_lshl_b32 s15, s15, 10
    s_add_u32 s15, s15, s0
    s_lshl_b32 s3, s31, 3
    s_add_u32 s15, s15, s3
    """)

def colsums(e, pend, arrive):
    ONES, AC, FB = 44, 48, 56
    e.stamp(9, 'E')
    for k in range(4):
        e(f'v_mov_b32 v{ONES + k}, s51')
    def rd(k):
        b, o = divmod(W_K * k, WIN)
        for u in range(2):
            for h in range(2):
                e(f'ds_read_b64_tr_b16 {vr(FB + 8 * (k % 4) + 4 * u + 2 * h, 2)}, v{vCs + b} offset:{o + 32 * u + 1792 * h}', tag=f'c{k}')
    for k in range(3):
        rd(k)
    for k in range(20):
        if k == CFG['bat']:
            e.stamp(10, 'E')
            if arrive:
                arrive()
            e.stamp(11, 'E')
            e.take(pend, CFG['q3'])
        e.wait(lg=f'c{k}')
        for u in range(2):
            e(f'{MF} {vr(AC + 4 * u, 4)}, {vr(FB + 8 * (k % 4) + 4 * u, 4)}, {vr(ONES, 4)}, {vr(AC + 4 * u, 4) if k else 0}')
        if k + 3 < 20:
            rd(k + 3)
        if k > CFG['bat'] and k % 2 == 0:
            e.take(pend, CFG['q5'])
    e(f's_lshl_b32 s3, s20, 11\n s_add_u32 s3, s3, {R_CS}\n v_add_u32 v{vT0}, s3, v{vL16}')
    e(f'ds_write_b128 v{vT0}, {vr(AC, 4)}\n ds_write_b128 v{vT0}, {vr(AC + 4, 4)} offset:1024')
    e(f'v_add_u32 v{vT0}, {R_CS}, v{vL16}\n s_waitcnt lgkmcnt(0)\n s_barrier')
    for a in range(7):
        e(f'ds_read_b128 {vr(CS + 4 * a, 4)}, v{vT0} offset:{1024 * a}')
    e.take(pend, CFG['q6'])
    e('s_waitcnt lgkmcnt(0)')

def pair_reduce(a, b):
    return f"""
    v_permlane32_swap_b32 v{a}, v{b}
    v_add_f32 v{a}, v{a}, v{b}
    v_mov_b32 v{b}, v{a}
    v_permlane16_swap_b32 v{a}, v{b}
    v_add_f32 v{a}, v{a}, v{b}
    v_mov_b32 v{b}, v{a}
    v_permlane32_swap_b32 v{a}, v{b}
    """

def phase_c(e, pend):
    vM = 12
    AC, FB, ST0, PK = 44, 100, 132, 140
    NF = 8
    acc = lambda a, rt: AC + 8 * a + 4 * rt
    def rd(seq, n):
        k, a = seq[n]
        return w1_frag(FB + 4 * ((n + (off2 if seq is seq2 else 0)) % NF), a, k, f'w{n}')
    p1, p2 = ((0, 1, 2, 3, 6), (4, 5)) if CFG['split'] == 5 else ((0, 1, 2, 3), (4, 5, 6))
    seq1 = [(k, a) for k in range(20) for a in p1]
    seq2 = [(k, a) for k in range(20) for a in p2]
    off2 = len(seq1) % NF
    for n in range(NF - 1):
        e.take(rd(seq1, n))
    e.stamp(13)
    e.spin(vT1, vBC, 10, 1)
    e.stamp(14)
    for rt in range(2):
        e(f'buffer_load_dwordx4 {vr(ST0 + 4 * rt, 4)}, v{vSa}, s[8:11], s23 offen offset:{1024 * rt} {LD}', tag='st')
    hl = []
    for k in range(20):
        for rt in range(2):
            t = f'buffer_load_dwordx4 {vr(8 * k + 4 * rt, 4, "a")}, v{vOob if CFG["skiph"] else vL16}, s[8:11], s{21 + rt} offen offset:{1024 * (k % 4)} {LD}'
            if k % 4 == 3:
                t += f'\n s_add_u32 s{21 + rt}, s{21 + rt}, 4096'
            hl.append((t, f'h{k}'))
    first = [hl.pop(0) for _ in range(CFG['h0'])]
    e.take(first, 3)
    Mix(e, first, 10)(setup_d())
    e.take(first)
    e.wait(vm='st')
    e(f'v_add_f32 v{vM}, v{ST0}, v{ST0 + 2}\n v_add_f32 v{vM + 1}, v{ST0 + 4}, v{ST0 + 6}')
    e(pair_reduce(vM, vM + 1))
    e(f"""
    v_mul_f32 v{vM}, {flit(-1 / 640)}, v{vM}
    v_mul_f32 v{vM + 1}, {flit(-1 / 640)}, v{vM + 1}
    v_cvt_pk_bf16_f32 v{vM + 1}, v{vM}, v{vM + 1}
    v_lshlrev_b32 v{vM}, 16, v{vM + 1}
    v_and_b32 v{vM + 1}, 0xffff0000, v{vM + 1}
    """)
    init = lambda a: [(f'v_pk_mul_f32 {vr(acc(a, rt) + 2 * k, 2)}, {vr(CS + 4 * a + 2 * k, 2)}, {vr(vM, 2)} op_sel:[0,{rt}] op_sel_hi:[1,{rt}]', None)
                      for rt in range(2) for k in range(2)]
    for a in p1:
        e.take(init(a))
    later = [t for a in p2 for t in init(a)]
    npk = [0]
    def epi(slots, rt, so, tag):
        out = []
        p = PK + 4 * (npk[0] % 4); npk[0] += 1
        for n, a in enumerate(slots):
            for k in range(2):
                out.append((f'v_cvt_pk_bf16_f32 v{p + 2 * n + k}, v{acc(a, rt) + 2 * k}, v{acc(a, rt) + 2 * k + 1}', None))
        out += [(f'v_pk_max_i16 v{p + k}, v{p + k}, 0', None) for k in range(2 * len(slots))]
        t = f's_add_u32 {so}, {so}, {56 * 1024}\n' if rt else ''
        out.append((t + (f'buffer_store_dwordx4 {vr(p, 4)}, v{vL16}, s[8:11], {so} offen {ST}' if len(slots) == 2 else
                         f'buffer_store_dwordx2 {vr(p, 2)}, v{vSt}, s[8:11], {so} offen {ST}'), tag))
        return out
    def gemm(seq, nxt, hook):
        for n, (k, a) in enumerate(seq):
            e.wait(vm=f'h{k}', lg=f'w{n}')
            m = n + NF - 1
            reads = rd(seq, m) if m < len(seq) else (rd(nxt, m - len(seq)) if nxt else [])
            for rt in range(2):
                d = vr(acc(a, rt), 4)
                e(f'{MF} {d}, {vr(FB + 4 * ((n + (off2 if seq is seq2 else 0)) % NF), 4)}, {vr(8 * k + 4 * rt, 4, "a")}, {d}')
                e.take(reads, 1)
                hook(n, k, rt)
    def hook1(n, k, rt):
        if rt == 1:
            due = (n + 1) * 2 // len(p1) - n * 2 // len(p1)
            e.take(hl if due else later, 1)
    gemm(seq1, seq2, hook1)
    assert not hl and not later
    e.stamp(15)
    fill = []
    for (slots, so) in (((0, 1), 's12'), ((2, 3), 's13')) + ((((6,), 's15'),) if 6 in p1 else ()):
        for rt in range(2):
            fill += epi(slots, rt, so, 'u1')
    free_after = {8: 8, 9: 10, 10: 13, 11: 15, 12: 18, 13: 99}
    def hook2(n, k, rt):
        if fill:
            if n >= 2:
                e.take(fill, CFG['cfill'])
        elif rt == 1 and pend and n % CFG['c2'] == 0:
            if k > free_after.get(int(pend[0][1][3:]), -1):
                e.take(pend, 1)
        if n == CFG['u1at'] and rt == 1:
            e.wait(vm='u1')
            e(f'v_mov_b32 v{vT0}, s48')
            e.arrive(vT0, 1)
    gemm(seq2, None, hook2)
    for so, slots in (('s14', (4, 5)),) + ((('s15', (6,)),) if 6 in p2 else ()):
        for rt in range(2):
            e.take(epi(slots, rt, so, 'u2'))
    e.stamp(16)

vDm, vDh, vOo, vOo2, vDw, vRd, vC1, vPk = 156, 157, 14, 15, 158, 161, 162, 163
def setup_d():
    t = d_role('s31', 's30') + f"""
    s_lshl_b32 s33, s60, 3
    s_lshl_b32 s34, s30, 2
    s_add_u32 s33, s33, s34
    s_add_u32 s38, s33, s20
    s_lshl_b32 s3, s38, 1
    s_add_u32 s3, s3, {C_CD}
    s_lshl_b32 s3, s3, 8
    v_mov_b32 v{vC1}, s3
    s_mul_i32 s39, s20, 14
    """
    for r in range(4):
        t += f"""
        s_add_u32 s3, s20, {r + 1}
        s_and_b32 s3, s3, 3
        s_mul_i32 s40, s3, 15360
        s_add_u32 s3, s3, s33
        s_mul_i32 s3, s3, 56
        s_add_u32 s3, s3, s39
        s_lshl_b32 s3, s3, 10
        s_add_u32 s{34 + r}, s3, {H1B}
        v_add_u32 v{vDw + r}, s40, v{vL16}
        """
    t += f"""
    v_lshlrev_b32 v{vDh}, 4, v{vI}
    v_lshl_add_u32 v{vDm}, v{vG}, 8, v{vDh}
    v_lshrrev_b32 v{vT0}, 5, v{vLane}
    v_lshl_add_u32 v{vDh}, v{vT0}, 8, v{vDh}
    v_and_b32 v{vT0}, 1, v{vG}
    v_lshl_add_u32 v{vDh}, v{vT0}, 3, v{vDh}
    s_lshl_b32 s41, s38, 10
    s_add_u32 s41, s41, {SB}
    s_mul_i32 s40, s38, 20480
    s_mul_i32 s3, s31, 2560
    s_add_u32 s40, s40, s3
    s_add_u32 s40, s40, {HB}
    s_sub_u32 s3, 32, s60
    s_cmp_eq_u32 s60, 0
    s_cselect_b32 s3, 16, s3
    s_cmp_eq_u32 s30, 0
    s_cselect_b32 s39, s60, s3
    v_lshl_add_u32 v{vOo}, s20, 4, v{vI}
    v_lshl_add_u32 v{vOo}, v{vOo}, 5, s39
    v_mul_u32_u24 v{vOo}, 1280, v{vOo}
    v_lshl_add_u32 v{vOo2}, v{vG}, 3, v{vOo}
    v_lshl_add_u32 v{vOo}, v{vG}, 4, v{vOo}
    s_mul_i32 s39, s31, 160
    """
    return t

def h1_load(n, rt):
    return (f's_add_u32 s3, s{34 + rt}, {4096 * (n // 4)}\n' +
            f'buffer_load_dwordx4 {ringreg(n, rt)}, v{vOob if CFG["skiph1"] else vL16x if n in (8, 9) else vL16}, s[8:11], s3 offen offset:{1024 * (n % 4)} {LD}',
            f'r{n}_{rt}' if n >= 10 else f'r{n}')

def phase_d(e, pend):
    vM, vR, vW = 11, 12, vDw
    AC, ST0, HR, HF, PB = 16, 104, 108, 176, 196
    misc = [(f'buffer_load_dwordx4 {vr(ST0, 4)}, v{vSa}, s[8:11], s41 offen {LD}', 'st'),
            (f'buffer_load_dwordx4 {vr(HR, 4)}, v{vDm}, s[8:11], s40 offen {LD}', 'st'),
            (f'buffer_load_dwordx4 {vr(HR + 4, 4)}, v{vDm}, s[8:11], s40 offen offset:1024 {LD}', 'st'),
            (f'buffer_load_dwordx2 {vr(HR + 8, 2)}, v{vDh}, s[8:11], s40 offen offset:2048 {LD}', 'st')]
    e(f's_add_u32 s48, s48, 256\n v_mov_b32 v{vT0}, s48')
    e.take(pend, CFG['d0'])
    e.wait(vm='u2')
    e.arrive(vT0, 1)
    e.take(pend, CFG['d1'])
    e.spin(vPk, vC1, 8, 1)
    e.stamp(17)
    stream = [h1_load(n, rt) for n in range(10) for rt in range(4)] + [h1_load(n, rt) for rt in range(4) for n in range(10, 14)]
    e.take(stream, 12)
    e(f'v_add_u32 v{vC1}, 256, v{vC1}')
    extra = pend + misc
    per = -(-len(extra) // 8)
    while extra and extra[0][1].startswith('w2_') and int(extra[0][1][3:]) < 2:
        e.take(extra, 1)
    dacc = lambda rt, a: vr(AC + 20 * rt + 4 * a, 4)
    for n in range(10):
        p2 = 7 if CFG['split'] == 5 else 5
        if n == p2 - 1:
            e.peek(vPk, vC1, 'pk')
        if n == p2:
            e.confirm(vPk, vC1, 8, 'pk')
        if n == 8:
            e('s_barrier')
        fill = [stream.pop(0) for _ in range(4)] + [extra.pop(0) for _ in range(min(per, len(extra)))]
        assert not any(t == f'w2_{n}' for _, t in fill + extra)
        e.wait(vm=(f'w2_{n}', f'r{n}'))
        step = max(1, 20 // len(fill))
        for rt in range(4):
            for a in range(5):
                e(f'{MF} {dacc(rt, a)}, {w2reg(n, a)}, {ringreg(n, rt)}, {dacc(rt, a) if n else 0}')
                if (5 * rt + a) % step == 0:
                    e.take(fill, 1)
        e.take(fill)
    assert not extra
    e.stamp(9, 'D')
    prep = [('WAITST', None), (f'v_add_f32 v{vM}, v{ST0}, v{ST0 + 2}', None), (f'v_add_f32 v{vR}, v{ST0 + 1}, v{ST0 + 3}', None)]
    prep += [(l.strip(), None) for l in (pair_reduce(vM, vR) + f"""
    v_mul_f32 v{vM}, {flit(1 / 640)}, v{vM}
    v_mul_f32 v{vR}, {flit(1 / 640)}, v{vR}
    v_fma_f32 v{vR}, -v{vM}, v{vM}, v{vR}
    v_max_f32 v{vR}, 0, v{vR}
    v_add_f32 v{vR}, {flit(1e-5)}, v{vR}
    v_rsq_f32 v{vR}, v{vR}
    """).split('\n') if l.strip()]
    for k in range(10):
        prep += [(f'v_lshlrev_b32 v{HF + 2 * k}, 16, v{HR + k}', None), (f'v_and_b32 v{HF + 2 * k + 1}, 0xffff0000, v{HR + k}', None)]
    writes = []
    for rt in range(4):
        for n in range(10, 14):
            e.wait(vm=(f'w2_{n}', f'r{n}_{rt}'))
            for a in range(5):
                e(f'{MF} {dacc(rt, a)}, {w2reg(n, a)}, {ringreg(n, rt)}, {dacc(rt, a)}')
                if stream and a == 0:
                    e.take(stream, 1)
                elif writes and n > 10 and a % 2 == 0:
                    e.take(writes, 1)
                elif prep and rt > 0:
                    if prep[0][0] == 'WAITST':
                        prep.pop(0); e.wait(vm='st')
                    e.take(prep, 1)
        e.take(writes)
        if rt < 3:
            writes = [(f'ds_write_b128 v{vW + rt}, {dacc(rt, a)} offset:{5120 * rt + 1024 * a}', None) for a in range(5)]
    e.take(prep)
    e('s_waitcnt lgkmcnt(0)\n s_barrier')
    e.stamp(10, 'D')
    for a in range(5):
        for r in range(3):
            e(f'ds_read_b128 {vr(PB + 12 * a + 4 * r, 4)}, v{vRd} offset:{5120 * r + 1024 * a}', tag=f'q{a}')
    for a in range(5):
        e.wait(lg=f'q{a}')
        o, q = AC + 60 + 4 * a, PB + 12 * a
        for k in (0, 2):
            e(f'v_pk_add_f32 {vr(o + k, 2)}, {vr(o + k, 2)}, {vr(q + k, 2)}\n v_pk_add_f32 {vr(q + 4 + k, 2)}, {vr(q + 4 + k, 2)}, {vr(q + 8 + k, 2)}')
        for k in (0, 2):
            e(f'v_pk_add_f32 {vr(o + k, 2)}, {vr(o + k, 2)}, {vr(q + 4 + k, 2)}')
        for k in (0, 2):
            e(f'v_pk_fma_f32 {vr(o + k, 2)}, {vr(o + k, 2)}, {vr(vR, 2)}, {vr(HF + 4 * a + k, 2)} op_sel_hi:[1,0,1]')
        for k in range(2):
            e(f'v_cvt_pk_bf16_f32 v{HR + 2 * a + k}, v{o + 2 * k}, v{o + 2 * k + 1}')
        if a in (1, 3):
            e(f'buffer_store_dwordx4 {vr(HR + 2 * a - 2, 4)}, v{vOo}, s[16:19], s39 offen offset:{32 * (a - 1)} {CFG["opol"]}')
    e(f'buffer_store_dwordx2 {vr(HR + 8, 2)}, v{vOo2}, s[16:19], s39 offen offset:128 {CFG["opol"]}')
    e.stamp(11, 'D')

def dump_stamps(e, nst):
    if not CFG['stamps']:
        return
    e(f'''
    s_waitcnt vmcnt(0)
    {CFG["clk"]} s[0:1]
    s_lshl_b32 s3, s2, 2
    s_add_u32 s3, s3, s20
    s_lshl_b32 s3, s3, 7
    s_add_u32 s3, s3, {TSB}
    s_waitcnt lgkmcnt(0)
    s_mov_b64 exec, 1
    v_mov_b32 v0, 0
    ''')
    if CFG['dbgwg'] >= 0:
        e(f's_cmp_lg_u32 s2, {CFG["dbgwg"]}\n s_cbranch_scc1 L_done\n s_cmp_lg_u32 s20, 0\n s_cbranch_scc1 L_done')
        for k, n in enumerate([1, 2, 3, 5, 7, 8, 9, 10, 11, 12, 14, 15, 16, 17]):
            e(f's_sub_u32 s3, s{64 + 2 * n}, s64\n v_mov_b32 v1, s3\n buffer_store_dword v1, v0, s[56:59], 0 offen offset:{4 * k + 32}')
        e(f's_sub_u32 s3, s0, s64\n v_mov_b32 v1, s3\n buffer_store_dword v1, v0, s[56:59], 0 offen offset:88')
        return
    for n in range(nst):
        e(f'v_mov_b32 v1, s{64 + 2 * n}\n buffer_store_dword v1, v0, s[8:11], s3 offen offset:{4 * n}')
    e(f'v_mov_b32 v1, s0\n buffer_store_dword v1, v0, s[8:11], s3 offen offset:{4 * nst}')

def build():
    e = K()
    phase_a(e)
    e.vm = ['old']
    w1l = [l for i in range(4) for l in w1_step(i)][CFG['w0']:]
    early = [l for n in range(8) for l in w2_loads(n)]
    late = [l for n in range(8, 14) for l in w2_loads(n)]
    e('s_cmp_ge_u32 s37, 5\n s_cbranch_scc1 LB_idle')
    tot0 = e.total
    pend, arrive = phase_b(e, list(w1l) + w1_step(4), list(early))
    done = len(early) - len(pend)
    rest = list(pend)
    colsums(e, pend, arrive)
    e('s_branch LB_join\n LB_idle:')
    e.vm, e.lg = [], []
    e.total = tot0
    w1l = list(w1l)
    task_finish(e, w1l)
    setup_c(e)
    e.take(w1l)
    e('s_barrier')
    e.take(w1_step(4))
    e.peek(vPk2, vPre2, 'pk2')
    e.confirm(vPk2, vPre2, 's47', 'pk2', slp=CFG['slpi'])
    e.stamp(12)
    e('s_barrier')
    e.take(early[:done])
    colsums(e, rest, None)
    e('LB_join:')
    e.vm = []
    pend += late
    phase_c(e, pend)
    phase_d(e, pend)
    if CFG['padto'] and CFG['padat'] == 18:
        e(f'Lpad:\n s_memrealtime s[96:97]\n s_waitcnt lgkmcnt(0)\n s_sub_u32 s96, s96, s98\n s_cmp_lt_u32 s96, {CFG["padto"]}\n s_cbranch_scc1 Lpad')
    dump_stamps(e, 18)
    e('L_done:\n s_endpgm')
    print('instructions', len(e.ins), 'nops', e.nops, file=sys.stderr)
    name = NAME + '_kernel'
    hdr = open('cdna_kernels/' + NAME + '.s.ref').read().split('; Override launch')[0]
    return (hdr + '; @launch grid=(256,1,1) block=(256,1,1) lds=163840\n.amdgcn_target "amdgcn-amd-amdhsa--gfx950"\n.text\n'
            f'.globl {name}\n.p2align 8\n.type {name},@function\n{name}:\n' + e.text() +
            '\n.section .rodata,"a"\n.p2align 6\n' + kd(name, 512, 102, 256))

if __name__ == '__main__':
    for a in sys.argv[2:]:
        k, _, v = a.partition('=')
        assert k in CFG, k
        CFG[k] = (int(v) if v.lstrip('-').isdigit() else v.replace('none', '')) if v else True
    open(sys.argv[1], 'w').write(build())
```

```python
import sys
sys.path.insert(0, 'tools')
from emit import *
from asmlib import *
from model import IDX_LO, IDX_HI

W1B, W2B, VB, HB, SB, H1B = 0x100000, 0x400000, 0x700000, 0xB00000, 0xE00000, 0x1000000
WS_BYTES = 0x1800000
XB = 2048 * 1280
MF = 'v_mfma_f32_16x16x32_bf16'
ST, LD = 'sc1', 'sc1'
C_BAR, C_PRE1, C_PRE2, C_BC, C_CD = 0, 128, 160, 192, 256
OOB = 0x80000000
TSB = 0x40000
SPIN = 100000

CFG = dict(stamps=False, clk='s_memrealtime', dbg='', xpol='', wpol='', cpf=1, slp=2, slpi=20,
           dbgwg=-1, wsoff=0, tlb=1024, tlbpos=1, tlbw=1, tlbn=4, padto=0, padat=18, pfirst=0, cpfearly=1, bmix=6, cfill=2, w1pol='', rpol='', w1a=6, rot=0, tat=1, touch=1, ta=0, hoist=0, jmap=0, skipw2=0, skipw1=0, nosync=0, skiph1=0, skiph=0, lite=0, tpol='', w0=6, n0=5, xmix=14, pre0=2, pret=0, nopre=0, nov=0, vpol='sc1', ppol='sc1', dst='', p1=36, q1=3, q2=5, q3=8, q4=8, c2=2, u1at=36, w1left=8, q5=1, q6=6, bat=9, opol='sc1', split=4, d1=0, pk2at=20, h0=10, d0=10)

vLane, vG, vI, vL16, vOne, vT0, vT1, vT2, vT3 = 1, 2, 3, 4, 5, 6, 7, 8, 9

class K(Emit):
    nlab = 0
    def lab(self, s):
        K.nlab += 1
        return f'L{s}{K.nlab}'
    def stamp(self, n, grp=''):
        if CFG['padto'] and CFG['padat'] == n and grp == '':
            l = self.lab('pad')
            self(f'{l}:\n s_memrealtime s[96:97]\n s_waitcnt lgkmcnt(0)\n s_sub_u32 s96, s96, s98\n s_cmp_lt_u32 s96, {CFG["padto"]}\n s_cbranch_scc1 {l}')
        if CFG['stamps'] and (n == 0 or not CFG['lite']) and (grp == CFG['dbg'] or (grp == '' and not (CFG['dbg'] and 9 <= n <= 12 and CFG['dbg'] != 'B'))):
            self(f'{CFG["clk"]} s[{64 + 2 * n}:{65 + 2 * n}]')
    def spin(self, v, vaddr, target, mask, srd='s[8:11]', slp=None):
        l, d = self.lab('poll'), self.lab('polld')
        self(f's_mov_b64 exec, {mask}\n s_mov_b32 s63, {0 if CFG["nosync"] else SPIN}\n {l}:')
        self(f'buffer_load_dword v{v}, v{vaddr}, {srd}, 0 offen sc1')
        self(f's_sub_u32 s63, s63, 1\n s_cbranch_scc1 {d}\n s_waitcnt vmcnt(0)')
        self(f'v_cmp_ne_u32 vcc, {target}, v{v}\n s_cbranch_vccz {d}\n s_sleep {CFG["slp"] if slp is None else slp}\n s_branch {l}')
        self(f'{d}:\n s_waitcnt vmcnt(0)\n s_mov_b64 exec, -1')
    def peek(self, v, vaddr, tag, srd='s[8:11]'):
        self(f'buffer_load_dword v{v}, v{vaddr}, {srd}, 0 offen sc1', tag=tag)
    def confirm(self, v, vaddr, target, tag, srd='s[8:11]', slp=None, mask=1):
        l = self.lab('ok')
        self.wait(vm=tag)
        keep, tot = list(self.vm), self.total
        self(f'v_cmp_ne_u32 vcc, {target}, v{v}\n s_cbranch_vccz {l}')
        self.spin(v, vaddr, target, mask, srd, slp)
        self(f'{l}:')
        self.vm, self.total = keep, tot
    def arrive(self, vaddr, mask):
        self(f's_mov_b64 exec, {mask}\n buffer_atomic_add v{vOne}, v{vaddr}, s[8:11], 0 offen sc1\n s_mov_b64 exec, -1')
    def take(self, lst, k=10 ** 6):
        for _ in range(min(k, len(lst))):
            t, tag = lst.pop(0)
            self(t, tag=tag)

def nib(lst):
    return sum(x << (4 * k) for k, x in enumerate(lst))

def round_bf16(e, v, t):
    e(f'v_cvt_pk_bf16_f32 v{t}, v{v}, v{v}\n v_lshlrev_b32 v{v}, 16, v{t}')

class Mix:
    def __init__(self, e, side, period):
        self.e, self.side, self.period, self.n = e, side, period, 0
    def __call__(self, text):
        for line in text.strip().split('\n'):
            if line.strip():
                self.e(line)
                self.n += 1
                if self.n >= self.period and not line.strip().startswith(('s_cmp', 's_cselect')):
                    self.n = 0
                    self.e.take(self.side, 1)

A_MAT, A_G, A_X = 0, 40960, 53248
W_K = 7168
R_BASE = 18 * W_K
R_CS = 20 * W_K
T_STG, X_STG, V_STG = 122880, 147456, 20 * W_K

JMAP = ([0, 3, 4, 7, 5, 6, 1, 2], [8, 11, 12, 13, 14, 15, 9, 10])
vXr = 167
vOob = 159
def roles(e):
    e(f"""
    s_bfe_u32 s60, s2, 0x20001
    s_lshl_b32 s60, s60, 2
    s_bfe_u32 s3, s2, 0x20003
    s_add_u32 s60, s60, s3
    s_bfe_u32 s3, s2, 0x10005
    s_lshl_b32 s50, s22, 1
    s_add_u32 s50, s50, s3
    s_lshr_b32 s37, s50, 1
    s_cmp_eq_u32 s37, 3
    s_cselect_b32 s37, 5, s37
    s_add_u32 s36, s37, 3
    s_lshl_b32 s3, s50, 2
    s_lshr_b32 s61, {nib(JMAP[0] if CFG['jmap'] else range(8))}, s3
    s_lshr_b32 s38, {nib(JMAP[1] if CFG['jmap'] else range(8, 16))}, s3
    s_bitcmp1_b32 s2, 0
    s_cselect_b32 s37, s37, s36
    s_cselect_b32 s61, s38, s61
    s_cselect_b32 s3, 8, 0
    s_and_b32 s61, s61, 15
    s_and_b32 s36, s50, 1
    s_or_b32 s50, s50, s3
    s_sub_u32 s3, 4, s37
    s_cmp_eq_u32 s36, 0
    s_cselect_b32 s38, s37, s3
    """)
    q_of_half(e, 's39', 's36')
    e(d_role('s44', None))
    e(f"""
    s_lshl_b32 s35, s20, 9
    s_add_u32 s35, s35, s39
    s_mul_i32 s35, s35, 1280
    s_lshl_b32 s3, s38, 8
    s_add_u32 s35, s35, s3
    s_lshl_b32 s53, s20, 12
    s_add_u32 s53, s53, {X_STG}
    v_mul_u32_u24 v{vXr}, 40960, v{vG}
    v_xor_b32 v{vT2}, v{vI}, v{vG}
    v_lshl_add_u32 v{vXr}, v{vT2}, 4, v{vXr}
    """)

def w1_setup(e):
    if CFG['skipw1'] or CFG['skipw2'] or CFG['skiph'] or CFG['skiph1']:
        e(f'v_mov_b32 v{vOob}, {OOB}')
    e(f"""
    s_mul_i32 s30, s61, 7
    s_mul_i32 s3, s61, 6
    s_add_u32 s3, s3, 12
    s_cmp_le_u32 s61, 11
    s_cselect_b32 s30, s30, s3
    s_cselect_b32 s47, 14, 12
    s_and_b32 s31, s30, 1
    s_lshl_b32 s32, s30, 5
    s_mul_i32 s3, s20, {32 * 3456}
    s_add_u32 s32, s32, s3
    s_mul_i32 s55, s20, {W_K}
    s_movk_i32 s3, 3456
    """)
    for n in range(7):
        e(f"""
        v_add_u32 v{vT0}, {64 * n}, v{vLane}
        v_mul_u32_u24 v{vT1}, 4682, v{vT0}
        v_lshrrev_b32 v{vT1}, 16, v{vT1}
        v_mad_i32_i24 v{vT0}, v{vT1}, -14, v{vT0}
        v_lshrrev_b32 v{vT2}, 1, v{vT1}
        v_cmp_le_u32 vcc, s47, v{vT0}
        v_xor_b32 v{vT2}, v{vT2}, v{vT1}
        v_and_b32 v{vT2}, 4, v{vT2}
        v_mul_u32_u24 v{vT2}, 3, v{vT2}
        v_xor_b32 v{vT1}, v{vT1}, v{vT2}
        v_lshlrev_b32 v{vT0}, 4, v{vT0}
        v_mad_u32_u24 v{vT0}, v{vT1}, s3, v{vT0}
        v_cndmask_b32 v{vT1}, 0, v{vOne}, vcc
        v_lshl_or_b32 v{vW1 + n}, v{vT1}, 31, v{vT0}
        """)
    e(f"""
    s_mul_i32 s46, s44, 56
    s_mul_i32 s3, s20, 14
    s_add_u32 s46, s46, s3
    s_mul_i32 s46, s46, 5120
    s_add_u32 s46, s46, {W2B}
    s_cmp_eq_u32 s20, 3
    s_cselect_b32 s47, 12, 14
    """)

def d_role(c8, half):
    t = f's_lshr_b32 {c8}, s50, 3\n s_lshl_b32 {c8}, {c8}, 2\n s_and_b32 s3, s50, 3\n s_or_b32 {c8}, {c8}, s3\n'
    return t + (f's_bfe_u32 {half}, s50, 0x10002' if half else '')

def phase_a(e):
    X, F, M0, M1 = 16, 56, 64, 68
    GA, TA, TP, VA, PR = 72, 92, 132, 172, 204
    AF, GR, SM, ONES, PR2 = X, 92, 96, 100, 152
    vXo, vGw, vGr, vSg, vS, vQ = 10, 11, 12, 13, 14, 15
    vS2, vRdy, vP0, vP1, vP4, vPs, vPa, vPb, vPd, vZ = 224, 225, 226, 227, 228, 229, 230, 231, 232, 233
    vD, vD4, vMa, vMb, vHi, vMid = 234, 112, 239, 240, 241, 242
    tmp, vXa, vPv, vPw = 244, VA, 238, 243
    def code_prefetch():
        lp, ln = e.lab('pc'), e.lab('nopf')
        e(f'''
        s_getpc_b64 s[46:47]
        {lp}:
        s_bfe_u32 s3, s2, 0x30003
        v_lshl_add_u32 v{vT0}, v0, 3, s3
        v_lshlrev_b32 v{vT0}, 7, v{vT0}
        v_cmp_gt_u32 vcc, L_done - {lp}, v{vT0}
        s_and_saveexec_b64 s[44:45], vcc
        s_cbranch_execz {ln}
        global_load_dword a255, v{vT0}, s[46:47]
        {ln}:
        s_mov_b64 exec, -1
        ''')
        e.vm.pop()
    def tlb_touch():
        srds = ['s[8:11]', 's[16:19]', 's[12:15]', 's[24:27]'][:CFG['tlbn']]
        guarded(e, f's_cmp_eq_u32 s20, {CFG["tlbw"]}', [f'v_mul_u32_u24 v{vT2}, {CFG["tlb"] << 10}, v{vLane}\n s_lshl_b32 s3, s2, 7'] +
                [f'buffer_load_dword a{252 - k}, v{vT2}, {r}, s3 offen' for k, r in enumerate(srds)])
    e.stamp(0)
    if CFG['padto']:
        e('s_memrealtime s[98:99]')
    e(f'''
    s_load_dwordx2 s[4:5], s[0:1], 0
    s_load_dwordx2 s[8:9], s[0:1], 80
    s_load_dwordx4 s[24:27], s[0:1], 48
    s_load_dwordx4 s[28:31], s[0:1], 64
    s_cmp_ge_u32 s2, 256
    s_cbranch_scc1 L_done
    v_lshrrev_b32 v{vT2}, 6, v0
    v_and_b32 v{vLane}, 63, v0
    v_readfirstlane_b32 s20, v{vT2}
    v_lshrrev_b32 v{vPv}, 3, v{vLane}
    v_and_b32 v{vT1}, 7, v{vLane}
    v_mul_u32_u24 v{vXo}, 81920, v{vPv}
    v_lshlrev_b32 v{vT2}, 1, v{vPv}
    v_and_b32 v{vT2}, 4, v{vT2}
    v_xor_b32 v{vT2}, v{vT2}, v{vT1}
    v_lshl_add_u32 v{vXo}, v{vT2}, 4, v{vXo}
    s_mov_b32 s6, {XB}
    s_mov_b32 s7, 0x20000
    s_and_b32 s21, s2, 63
    s_lshr_b32 s22, s2, 6
    s_xor_b32 s22, s22, 3
    s_mul_i32 s23, s21, 1280
    s_mul_i32 s3, s20, 655360
    s_add_u32 s23, s23, s3
    s_lshl_b32 s52, s20, 10
    s_add_u32 s53, s52, {A_X}
    s_add_u32 s54, s23, 640
    s_add_u32 s55, s53, 20480
    s_bitcmp1_b32 s22, 0
    s_cselect_b32 s62, s54, s23
    s_cselect_b32 s63, s55, s53
    s_cselect_b32 s23, s23, s54
    s_cselect_b32 s53, s53, s55
    ''')
    if CFG['cpf'] and CFG['cpfearly']:
        code_prefetch()
    e(f'''
    s_mov_b32 s10, {WS_BYTES}
    s_mov_b32 s11, 0x20000
    v_mov_b32 v{vZ}, 0
    s_lshl_b32 s3, s20, 3
    s_or_b32 s50, s3, s2
    s_cmp_ge_u32 s50, 8
    s_waitcnt lgkmcnt(0)
    {'s_cselect_b32 s3, 1, 0' if CFG['wsoff'] else ''}
    {'s_add_u32 s8, s8, %d' % (CFG['wsoff'] << 20) if CFG['wsoff'] else ''}
    {'s_addc_u32 s9, s9, 0' if CFG['wsoff'] else ''}
    {'s_cmp_lg_u32 s3, 0' if CFG['wsoff'] else ''}
    s_cbranch_scc1 LA_nozero
    v_lshlrev_b32 v{vT2}, 8, v{vLane}
    s_lshl_b32 s3, s2, 14
    buffer_store_dword v{vZ}, v{vT2}, s[8:11], s3 offen sc1
    LA_nozero:
    ''', tag='zero')
    for so, mo in (('s62', 's63'), ('s23', 's53')):
        for n in range(5):
            e(f's_add_u32 m0, {mo}, {3968 * n}\n buffer_load_dwordx4 v{vXo}, s[4:7], {so} offen offset:{128 * n} {CFG["xpol"]} lds', tag='x')
    e.stamp(1)
    mx = Mix(e, [], 1000)
    e(f'''
    s_mov_b32 s12, s26
    s_mov_b32 s13, s27
    s_mov_b32 s14, {640 * 3456}
    s_mov_b32 s15, 0x20000
    s_mov_b32 s26, {640 * 3456}
    s_mov_b32 s27, 0x20000
    s_mov_b32 s16, s28
    s_mov_b32 s17, s29
    s_mov_b32 s18, {XB}
    s_mov_b32 s19, 0x20000
    v_and_b32 v{vT0}, 1, v{vLane}
    v_lshrrev_b32 v{vG}, 4, v{vLane}
    v_and_b32 v{vI}, 15, v{vLane}
    v_lshlrev_b32 v{vL16}, 4, v{vLane}
    v_mov_b32 v{vOne}, 1
    ''')
    if CFG['tlb'] and CFG['tlbpos'] == 1:
        tlb_touch()
    mx(f'''
    v_lshrrev_b32 v{vHi}, 3, v{vI}
    s_add_u32 s41, s22, 1
    s_cmp_lt_u32 s22, 3
    s_cselect_b32 s41, s41, 0
    s_cselect_b32 s42, 0, 4
    s_cselect_b32 s43, 2, 0
    v_mul_u32_u24 v{vT1}, s42, v{vHi}
    v_add_u32 v{vT1}, s41, v{vT1}
    v_mul_u32_u24 v{vT2}, s43, v{vHi}
    v_mad_u32_u24 v{vT2}, v{vT1}, v{vG}, v{vT2}
    v_cvt_f32_u32 v{vT2}, v{vT2}
    v_mul_f32 v{vT2}, {flit(0.125)}, v{vT2}
    v_cos_f32 v{vT2}, v{vT2}
    v_and_b32 v{vT1}, 1, v{vT1}
    v_lshlrev_b32 v{vT1}, 15, v{vT1}
    v_cvt_pk_bf16_f32 v{tmp}, v{vT2}, 0
    v_mov_b32 v{tmp + 1}, 0
    v_xor_b32 v{tmp + 2}, v{vT1}, v{tmp}
    v_mov_b32 v{tmp + 3}, 0
    v_and_b32 v{vT1}, 3, v{vLane}
    v_lshlrev_b32 v{vT2}, 4, v{vT1}
    v_bfe_u32 v{vMid}, v{vI}, 2, 1
    v_lshlrev_b64 {vr(tmp, 2)}, v{vT2}, {vr(tmp, 2)}
    v_lshlrev_b64 {vr(tmp + 2, 2)}, v{vT2}, {vr(tmp + 2, 2)}
    v_cmp_eq_u32 vcc, 0, v{vMid}
    v_lshlrev_b32 v{vSg}, 31, v{vT0}
    v_lshrrev_b32 v{vT2}, 16, v{vSg}
    ''')
    for h in range(2):
        for k in range(2):
            mx(f'v_cndmask_b32 v{F + 4 * h + k}, 0, v{tmp + 2 * h + k}, vcc\n v_cndmask_b32 v{F + 4 * h + 2 + k}, v{tmp + 2 * h + k}, v{vZ}, vcc')
    mx(f'''
    v_or_b32 v{vSg}, v{vSg}, v{vT2}
    v_bfe_u32 v{vT1}, v{vI}, 1, 1
    v_lshrrev_b32 v{vT2}, 2, v{vI}
    v_lshl_add_u32 v{vT2}, s20, 2, v{vT2}
    v_mul_u32_u24 v{vPs}, 204800, v{vT2}
    v_lshl_add_u32 v{vPs}, v{vT1}, 6, v{vPs}
    v_lshl_add_u32 v{vPs}, v{vT0}, 5, v{vPs}
    v_sub_u32 v{vT3}, 32, v{vT2}
    v_cmp_eq_u32 vcc, 0, v{vT2}
    v_and_b32 v{tmp}, 1, v{vG}
    v_lshrrev_b32 v{tmp + 1}, 1, v{vG}
    v_cndmask_b32 v{vT3}, v{vT3}, 16, vcc
    v_cmp_eq_u32 vcc, 0, v{vT1}
    v_lshl_add_u32 v{vP4}, v{tmp}, 4, v{vPs}
    v_xor_b32 v{vT1}, v{vT1}, v{tmp + 1}
    v_cndmask_b32 v{vT2}, v{vT3}, v{vT2}, vcc
    v_lshl_add_u32 v{vP0}, v{vT1}, 15, v{vP4}
    v_lshl_add_u32 v{vP1}, v{vT1}, 14, v{vP4}
    v_lshl_add_u32 v{vP4}, v{tmp + 1}, 13, v{vP4}
    v_lshl_add_u32 v{vPs}, v{vG}, 3, v{vPs}
    v_lshlrev_b32 v{vGw}, 3, v{tmp}
    v_mad_u32_u24 v{vGw}, v{tmp + 1}, s54, v{vGw}
    v_lshlrev_b32 v{vS2}, 31, v{vT2}
    v_cvt_f32_u32 v{vT2}, v{vT2}
    v_mul_f32 v{vT2}, {flit(1 / 32)}, v{vT2}
    v_cvt_f32_u32 v{vT1}, v{vT0}
    v_fmaak_f32 v{vT1}, {flit(0.25)}, v{vT1}, {flit(0.25)}
    v_lshlrev_b32 v{vT3}, 2, v{vG}
    v_cvt_f32_u32 v{vD4}, v{vT3}
    v_fma_f32 v{tmp}, v{vT2}, v{vD4}, v{vT1}
    v_add_f32 v{tmp + 1}, v{tmp}, v{vT2}
    v_add_f32 v{tmp + 2}, v{tmp + 1}, v{vT2}
    v_add_f32 v{tmp + 3}, v{tmp + 2}, v{vT2}
    v_lshrrev_b32 v{vT1}, 16, v{vS2}
    v_or_b32 v{vS2}, v{vS2}, v{vT1}
    '''.replace('v_mad_u32_u24 v%d, v%d, s54' % (vGw, tmp + 1), 's_movk_i32 s54, 5120\n v_mad_u32_u24 v%d, v%d, s54' % (vGw, tmp + 1)))
    for rr in range(4):
        mx(f'v_sin_f32 v{tmp + 4 + rr}, v{tmp + rr}\n v_cos_f32 v{tmp + 8 + rr}, v{tmp + rr}')
    for k in range(2):
        mx(f'v_cvt_pk_bf16_f32 v{M0 + k}, v{tmp + 4 + 2 * k}, v{tmp + 5 + 2 * k}')
        mx(f'v_cvt_pk_bf16_f32 v{M1 + k}, -v{tmp + 8 + 2 * k}, -v{tmp + 9 + 2 * k}')
    for k in range(2):
        mx(f'v_xor_b32 v{M0 + 2 + k}, v{vS2}, v{M0 + k}\n v_xor_b32 v{M1 + 2 + k}, v{vS2}, v{M1 + k}')
    mx(f'''
    v_lshl_add_u32 v{vT0}, s20, 4, v{vT3}
    v_cvt_f32_u32 v{vD}, v{vT0}
    v_add_f32 v{vD + 1}, 1.0, v{vD}
    v_add_f32 v{vD + 2}, 2.0, v{vD}
    v_add_f32 v{vD + 3}, 1.0, v{vD + 2}
    v_add_u32 v{vMa}, s52, v{vL16}
    v_and_b32 v{vT0}, 7, v{vLane}
    v_lshl_add_u32 v{vT1}, s20, 3, v{vT0}
    s_movk_i32 s54, 160
    v_mad_u32_u24 v{vGw}, v{vT1}, s54, v{vGw}
    v_lshl_add_u32 v{vGw}, v{vHi}, 4, v{vGw}
    v_lshrrev_b32 v{vT1}, 2, v{vLane}
    v_mul_u32_u24 v{vGr}, 160, v{vT1}
    v_and_b32 v{vT2}, 3, v{vLane}
    v_lshl_add_u32 v{vGr}, v{vT2}, 3, v{vGr}
    v_lshl_add_u32 v{vT1}, v{vT0}, 7, s52
    v_lshlrev_b32 v{vT0}, 5, v{vT0}
    v_and_b32 v{vT0}, 0x40, v{vT0}
    v_mad_u32_u24 v{vT2}, v{vG}, 10, v{vHi}
    s_movk_i32 s54, {A_X >> 5}
    v_lshl_add_u32 v{vT2}, v{vT2}, 4, s54
    s_movk_i32 s54, 0x70
    s_movk_i32 s55, 0xfff
    ''')
    for m in range(5):
        if m:
            mx(f'v_add_u32 v{vT2}, 32, v{vT2}')
        mx(f'''
        v_xor_b32 v{vT3}, v{vT0}, v{vT2}
        v_lshlrev_b32 v{tmp}, 5, v{vT2}
        v_and_or_b32 v{vT3}, v{vT3}, s54, v{vT1}
        v_bfi_b32 v{vXa + m}, s55, v{vT3}, v{tmp}
        ''')
    e('s_mov_b32 s56, s30\n s_mov_b32 s57, s31\n s_mov_b32 s58, 256\n s_mov_b32 s59, 0x20000\n s_mov_b32 s51, 0x3f803f80')
    e.stamp(9, 'A')
    def body(sig3):
        tl = [(0, 0, 64, 8), (0, 4, 64, 8), (0, 16, 32, 8), (0, 20, 32, 8), (0, 32, 8, 4)]
        tl += [(4, 0, 16, 8), (4, 4, 16, 8), (4, 32, 8, 4)] if sig3 else []
        def touch_chip():
            e(f'''
            s_lshl_b32 s3, s2, 2
            s_add_u32 s3, s3, s20
            s_mul_i32 s3, s3, {17 * 128}
            v_lshlrev_b32 v{vT2}, 7, v{vLane}
            s_bfm_b64 exec, 17, 0
            buffer_load_dword a254, v{vT2}, s[24:27], s3 offen {CFG['tpol']}
            s_mov_b64 exec, -1
            ''')
        def task_loads():
            if CFG['touch'] == 1:
                touch_chip()
            if CFG['touch'] >= 2:
                e(f'''
                s_lshr_b32 s3, s2, 3
                s_lshl_b32 s3, s3, 2
                s_add_u32 s3, s3, s20
                s_mul_i32 s3, s3, {5 * 3456}
                s_and_b32 s33, s2, 1
                s_mul_i32 s33, s33, 1792
                s_add_u32 s3, s3, s33
                s_bfm_b64 exec, 56, 0
                buffer_load_dword a254, v{vPv}, s[24:27], s3 offen {CFG['tpol']}
                ''')
                if CFG['touch'] == 3:
                    e(f's_add_u32 s3, s3, {4 * 3456}\n s_bfm_b64 exec, 14, 0\n buffer_load_dword a253, v{vPv}, s[24:27], s3 offen {CFG["tpol"]}')
                e('s_mov_b64 exec, -1')
        def part(fe, d, c0, addr, off):
            for r in range(0, 4, 2):
                e(f'v_pk_mul_f32 {vr(tmp + r, 2)}, {vr(d + r, 2)}, {vr(fe, 2)} op_sel_hi:[1,0]')
            for r in range(4):
                e(f'v_cos_f32 v{tmp + 4 + r}, v{tmp + r}\n v_sin_f32 v{tmp + 8 + r}, v{tmp + r}')
            for k in range(4):
                e(f'v_cvt_pk_bf16_f32 v{c0 + k}, v{tmp + 4 + 2 * k}, v{tmp + 5 + 2 * k}')
            e(f'ds_write_b128 v{addr}, {vr(c0, 4)} offset:{off}')
        def lanepart(dst, dmid, dhi, add):
            e(f'''
            v_and_b32 v{dst}, 3, v{vI}
            v_mad_u32_u24 v{dst}, v{vMid}, {dmid}, v{dst}
            v_mad_u32_u24 v{dst}, v{vHi}, {dhi}, v{dst}
            v_lshl_add_u32 v{dst}, v{dst}, 3, {add}
            v_cvt_f32_u32 v{dst}, v{dst}
            v_mul_f32 v{dst}, {flit(1 / 640)}, v{dst}
            ''')
        def last_step(it):
            sub = [tl[min(4 * it + w, len(tl) - 1)] for w in range(4)]
            pk = lambda f: sum(f(t) << (8 * w) for w, t in enumerate(sub))
            e(f'''
            s_lshl_b32 s3, s20, 3
            s_lshr_b32 s42, {pk(lambda t: t[2])}, s3
            s_and_b32 s42, s42, 255
            s_lshr_b32 s43, {pk(lambda t: t[3])}, s3
            s_and_b32 s43, s43, 255
            s_lshr_b32 s44, {pk(lambda t: (t[0] + 8 * t[1]) // 4)}, s3
            s_and_b32 s44, s44, 255
            s_lshl_b32 s44, s44, 2
            s_add_u32 s44, s44, s41
            s_mul_i32 s45, s20, 5120
            ''')
            lanepart(vT0, 's43', 's42', 's44')
            e(f'v_add_u32 v{vMb}, s45, v{vL16}')
            part(vT0, vD4, TA + 8, vMb, A_MAT + 20480 * it + 4096)
        e(f'v_cvt_f32_u32 v{vD4}, v{vG}\n v_fmaak_f32 v{vD4}, 4.0, v{vD4}, {flit(64.0)}')
        e(f'v_add_f32 v{vD4 + 1}, 1.0, v{vD4}\n v_add_f32 v{vD4 + 2}, 2.0, v{vD4}\n v_add_f32 v{vD4 + 3}, 1.0, v{vD4 + 2}')
        last = None
        for a, (ko, base, dhi, dmid) in enumerate(tl):
            if (dhi, dmid) != last:
                last = (dhi, dmid)
                lanepart(vT1, dmid, dhi, 's41')
            e(f'v_add_f32 v{vT0}, {flit((ko + 8 * base) / 640)}, v{vT1}')
            part(vT0, vD, TA + 4 * (a % 2), vMa, A_MAT + 5120 * a)
            if a == 0 and sig3:
                l = e.lab('rdy')
                keep = list(e.vm)
                e(f's_cmp_ge_u32 s50, 8\n s_cbranch_scc1 {l}')
                e.wait(vm='zero')
                e(f's_lshl_b32 s3, s2, 2\n s_mov_b64 exec, 1\n buffer_store_dword v{vOne}, v{vZ}, s[56:59], s3 offen sc1\n s_mov_b64 exec, -1\n {l}:')
                e.vm = keep
            if a == CFG['ta'] and CFG['touch'] >= 2:
                touch_chip()
            if a == 0 and CFG['tlb'] and CFG['tlbpos'] == 2:
                tlb_touch()
            if a == 1:
                last_step(0)
            if a == 3:
                l = e.lab('ls')
                if not sig3:
                    e(f's_cmp_lg_u32 s20, 0\n s_cbranch_scc1 {l}')
                last_step(1)
                e(f'{l}:')
            if a in (0, 4):
                e.stamp(10 + a // 4, 'A')
        if not sig3 and CFG['hoist'] >= 1:
            roles(e)
        if not sig3 and CFG['hoist'] >= 2:
            w1_setup(e)
        if CFG['touch'] >= 2:
            e(f'''
            v_mul_u32_u24 v{vT0}, 4682, v{vLane}
            v_lshrrev_b32 v{vT0}, 16, v{vT0}
            v_mul_u32_u24 v{vPv}, {3456 - 14 * 128}, v{vT0}
            v_lshl_add_u32 v{vPv}, v{vLane}, 7, v{vPv}
            ''')
        e(f'''
        v_sub_u32 v{vT0}, v{vI}, v{vG}
        v_mad_i32_i24 v{vT0}, v{vG}, -3, v{vT0}
        v_cmp_eq_u32 s[0:1], 0, v{vT0}
        v_cmp_eq_u32 s[62:63], 1, v{vT0}
        v_cmp_eq_u32 s[100:101], 2, v{vT0}
        v_cmp_eq_u32 s[28:29], 3, v{vT0}
        s_mov_b32 s48, {flit(1 / 640)}
        ''')
        for k in range(4):
            e(f'v_mov_b32 v{ONES + k}, s51')
        e('s_waitcnt lgkmcnt(0)\n s_barrier')
        e.stamp(2)
        e.wait(vm='x')
        e.stamp(3)
        order = [(m, h) for m in range(5) for h in range(2)]
        xr = lambda m, h: X + 8 * m + 4 * h
        for (m, h) in order:
            e(f'ds_read_b128 {vr(xr(m, h), 4)}, v{vXa + m} offset:{20480 * h}', tag=f'x{m}{h}')
        if CFG['tat'] == 1:
            task_loads()
        mats = [(f'ds_read_b128 {vr(20 * a + 4 * n, 4, "a")}, v{vL16} offset:{A_MAT + 5120 * a + 1024 * n}', f'm{a}')
                for a in range(len(tl)) for n in range(5)]
        for n, (m, h) in enumerate(order):
            x = xr(m, h)
            e.wait(lg=f'x{m}{h}')
            e(f'{MF} {vr(GR, 4)}, {vr(x, 4)}, {vr(x, 4)}, {vr(GR, 4) if n else 0}')
            e.take(mats, 1)
            e(f'{MF} {vr(SM, 4)}, {vr(ONES, 4)}, {vr(x, 4)}, {vr(SM, 4) if n else 0}')
            e.take(mats, 1 if n >= 3 else 0)
        e.stamp(4)
        fold = [(f'{MF} {vr(GA + 4 * m, 4)}, {vr(F + 4 * h, 4)}, {vr(xr(m, h), 4)}, {vr(GA + 4 * m, 4) if h else 0}', None) for h in range(2) for m in range(5)]
        e.take(fold, 3)
        e.take(mats, 8)
        mg = Mix(e, fold, 2)
        mg(f'''
        v_cndmask_b32 v{vQ}, 0, v{GR}, s[0:1]
        v_cndmask_b32 v{vQ}, v{vQ}, v{GR + 1}, s[62:63]
        v_cndmask_b32 v{vQ}, v{vQ}, v{GR + 2}, s[100:101]
        v_cndmask_b32 v{vQ}, v{vQ}, v{GR + 3}, s[28:29]
        v_add_f32_dpp v{vS}, v{SM}, v{SM} row_ror:8 row_mask:0xf bank_mask:0xf
        v_mov_b32 v{vS2}, v{vQ}
        v_mul_f32 v{vS}, {flit(1 / 640)}, v{vS}
        v_permlane32_swap_b32 v{vS2}, v{vQ}
        v_add_f32 v{vQ}, v{vS2}, v{vQ}
        v_mov_b32 v{vS2}, v{vQ}
        v_permlane16_swap_b32 v{vS2}, v{vQ}
        v_add_f32 v{vQ}, v{vS2}, v{vQ}
        v_mul_f32 v{vS2}, v{vS}, v{vS}
        v_add_f32_dpp v{vQ}, v{vQ}, v{vQ} row_ror:8 row_mask:0xf bank_mask:0xf
        v_fma_f32 v{vQ}, v{vQ}, s48, -v{vS2}
        v_max_f32 v{vQ}, 0, v{vQ}
        v_add_f32 v{vQ}, {flit(1e-5)}, v{vQ}
        v_rsq_f32 v{vQ}, v{vQ}
        ''')
        e.take(fold)
        if sig3:
            e(f'v_cmp_gt_u32 vcc, 32, v{vLane}')
            round_bf16(e, vS, vS2)
            e(f'v_mul_f32 v{vS}, {flit(-8.0)}, v{vS}\n v_mul_f32 v{vS}, v{vS}, v{vQ}\n v_cndmask_b32 v{vS}, 0, v{vS}, vcc')
        for m in range(5):
            g = GA + 4 * m
            for k in range(2):
                if sig3:
                    e(f'v_pk_fma_f32 {vr(g + 2 * k, 2)}, {vr(g + 2 * k, 2)}, {vr(vS, 2)}, {vr(vS, 2)} op_sel:[0,1,0] op_sel_hi:[1,1,0]')
                else:
                    e(f'v_pk_mul_f32 {vr(g + 2 * k, 2)}, {vr(g + 2 * k, 2)}, {vr(vS, 2)} op_sel:[0,1] op_sel_hi:[1,1]')
            e(f'v_cvt_pk_bf16_f32 v{g}, v{g}, v{g + 1}\n v_cvt_pk_bf16_f32 v{g + 1}, v{g + 2}, v{g + 3}')
            e(f'ds_write_b64 v{vGw}, {vr(g, 2)} offset:{A_G + 32 * m}', tag='gw')
        e.wait(lg='gw')
        e('s_barrier')
        e.stamp(5)
        for tau in range(5):
            for c in range(2):
                b = AF + 8 * tau + 4 * c
                for u in range(2):
                    e(f'ds_read_b64_tr_b16 {vr(b + 2 * u, 2)}, v{vGr} offset:{A_G + 5120 * c + 2560 * u + 32 * tau}', tag=f'g{tau}{c}')
        if CFG['tat'] == 2:
            task_loads()
        for tau in range(5):
            for c in range(2):
                b = AF + 8 * tau + 4 * c
                e.wait(lg=f'g{tau}{c}')
                if sig3:
                    e(f'{MF} {vr(TA + 20 * c + 4 * tau, 4)}, {vr(b, 4)}, {vr(M0, 4)}, 0')
                else:
                    t = vr(TA + 4 * tau, 4)
                    e(f'{MF} {t}, {vr(b, 4)}, {vr(M1 if c else M0, 4)}, {t if c else 0}')
        e(f's_lshl_b32 s42, s21, 7\n s_add_u32 s42, s42, {VB}\n s_mul_i32 s3, s41, 40960\n s_add_u32 s42, s42, s3')
        def pack(s):
            out = []
            for tau in range(5):
                t = TA + 20 * s + 4 * tau
                o = TP + 20 * s + 4 * tau
                for k in range(2):
                    out.append((f'v_cvt_pk_bf16_f32 v{o + k}, v{t + 2 * k}, v{t + 2 * k + 1}', None))
                if tau:
                    out += xors
                xors = [(f'v_xor_b32_dpp v{o + 2 + k}, v{o + k}, v{vSg} quad_perm:[1,0,3,2] row_mask:0xf bank_mask:0xf', None) for k in range(2)]
            return out + xors
        p0 = pack(0)
        e.take(p0, 6)
        e.stamp(6)
        groups = [((0, 1), 0, vP0, 0), ((2, 3), 0, vP1, 8192), ((4,), 0, vPs, 16384)]
        if sig3:
            groups += [((5, 6), 1, vP4, 4 * 40960), ((7,), 1, vPs, 4 * 40960 + 16384)]
        def finish(g):
            tls, s, va, so = g
            o = VA + 4 * tls[0]
            out = []
            for n, a in enumerate(tls):
                for k in range(2):
                    out.append((f'v_cvt_pk_bf16_f32 v{o + 2 * n + k}, v{VA + 4 * a + 2 * k}, v{VA + 4 * a + 2 * k + 1}', None))
            out.append((f's_add_u32 s43, s42, {so}\n buffer_store_dwordx{2 * len(tls)} {vr(o, 2 * len(tls))}, v{va}, s[8:11], s43 offen {CFG["vpol"]}', 'vst'))
            if CFG['nov']: out.pop()
            return out
        e(f'v_and_b32 v{vZ}, 7, v{vLane}\n v_lshlrev_b32 v{vZ}, 2, v{vZ}\n buffer_load_dword v{vRdy}, v{vZ}, s[56:59], 0 offen sc1', tag='rdy')
        fill = p0 + (pack(1) if sig3 else [])
        for gi, g in enumerate(groups):
            seq = [(a, n) for n in range(5) for a in g[0]]
            for k, (a, n) in enumerate(seq):
                d = vr(VA + 4 * a, 4)
                while any(t == f'm{a}' for _, t in mats):
                    e.take(mats, 1)
                e.wait(lg=f'm{a}')
                e(f'{MF} {d}, {vr(20 * a + 4 * n, 4, "a")}, {vr(TP + 20 * g[1] + 4 * n, 4)}, {d if n else 0}')
                if k == 2 and gi > 0:
                    fill = finish(groups[gi - 1]) + fill
                if gi == 0 and k < 7:
                    e.take(fill, 2)
                elif fill:
                    e.take(fill, 1); e.take(mats, 1)
                else:
                    e.take(mats, 2)
            if gi == 2:
                e.take(fill)
        e.take(fill + finish(groups[-1]))
        e.stamp(7)
        leave_a(e, sig3)
    e('s_cmp_eq_u32 s22, 3\n s_cbranch_scc1 LA_sig3')
    vm0, lg0 = list(e.vm), list(e.lg)
    body(False)
    e('s_branch LA_end\n LA_sig3:')
    e.vm, e.lg = list(vm0), list(lg0)
    body(True)
    e('LA_end:')

W2V, vL16x = 176, 10
def w2reg(n, a):
    if n < 4:
        return vr(160 + 20 * n + 4 * a, 4, 'a')
    if n < 8:
        return vr(W2V + 20 * (n - 4) + 4 * a, 4)
    r = 48 + 20 * (n - 8) + 4 * a
    return vr(r, 4, 'a') if r < 160 else vr(132 + r - 160, 4)
def ringreg(n, rt):
    if n >= 10:
        return vr(160 + 16 * (n - 10) + 4 * rt, 4, 'a')
    s = n % 4
    return vr(240 + 4 * rt, 4, 'a') if s == 0 else vr(16 * (s - 1) + 4 * rt, 4, 'a')
def w2_loads(n):
    return [((f's_add_u32 s62, s46, {5120 * n + 4096 * (a // 4)}\n' if a % 4 == 0 else '') +
             f'buffer_load_dwordx4 {w2reg(n, a)}, v{vOob if CFG["skipw2"] else vL16x if n in (8, 9) else vL16}, s[8:11], s62 offen offset:{1024 * (a % 4)} {LD}', f'w2_{n}') for a in range(5)]

vPre2, vBarA, vPk2, vW1 = 11, 12, 15, 160
def w1_step(i):
    head = (f's_add_u32 s53, s60, {i}\n s_and_b32 s53, s53, 3\n' if i < 4 and CFG['rot'] else f's_mov_b32 s53, {i}\n') + \
        f's_mul_i32 s33, s53, {4 * 32 * 3456}\n s_add_u32 s33, s33, s32\n s_mul_i32 s53, s53, {4 * W_K}\n s_add_u32 s53, s53, s55\n'
    return [((head if n == 0 else '') +
             f's_add_u32 m0, s53, {1024 * n}\n buffer_load_dwordx4 v{vOob if CFG["skipw1"] else vW1 + n}, s[24:27], s33 offen {CFG["w1pol"]} lds', 'w1') for n in range(7)]

def guarded(e, cond, items):
    l = e.lab('opt')
    kv, kl, tot = list(e.vm), list(e.lg), e.total
    e(f'{cond}\n s_cbranch_scc0 {l}')
    for t in items:
        e(t[0] if isinstance(t, tuple) else t)
    e(f'{l}:')
    e.vm, e.lg, e.total = kv, kl, tot

def leave_a(e, sig3):
    vRdy, vZ = 225, 233
    w0 = 0 if sig3 else CFG['w0']
    if sig3 or CFG['hoist'] < 1:
        roles(e)
    if not sig3:
        guarded(e, 's_cmp_lt_u32 s37, 5',
                [f's_add_u32 m0, s53, {1024 * n}\n buffer_load_dwordx4 v{vXr}, s[4:7], s35 offen {CFG["rpol"]} lds\n' +
                 (f's_add_u32 s35, s35, {4 * 40960}\n v_xor_b32 v{vXr}, {64 if n % 2 == 0 else 192}, v{vXr}' if n < 3 else '') for n in range(4)])
    task_start(e, 0)
    if sig3:
        e(f's_mov_b32 s43, {OOB}')
    else:
        task_start(e, 1)
        if CFG['hoist'] < 2:
            w1_setup(e)
        e('s_barrier')
        e.take([l for i in range(4) for l in w1_step(i)], w0)
    e(f"""
    s_bfe_u32 s3, s2, 0x40003
    v_lshl_add_u32 v{vBarA}, v{vLane}, 4, s3
    v_lshlrev_b32 v{vBarA}, 8, v{vBarA}
    s_lshl_b32 s3, s44, 2
    s_add_u32 s3, s3, s20
    s_add_u32 s3, s3, {C_PRE2}
    s_lshl_b32 s3, s3, 8
    v_mov_b32 v{vPre2}, s3
    """)
    e(f's_waitcnt vmcnt({w0 + 5})')
    if not sig3:
        guarded(e, 's_cmp_lt_u32 s37, 5', [f's_waitcnt vmcnt({w0 + 4})'])
    guarded(e, f's_cmp_lt_u32 s37, 5\n s_cselect_b32 s3, 0, s41\n s_cmp_eq_u32 s3, {OOB}', [f's_waitcnt vmcnt({w0})'])
    e.stamp(12, 'A')
    e.vm = []
    e.confirm(vRdy, vZ, 1, 'rdy', 's[56:59]', mask='0xff')
    e('s_barrier')
    guarded(e, 's_cmp_eq_u32 s20, 0', [f's_mov_b64 exec, 0xff\n buffer_atomic_add v{vOne}, v{vBarA}, s[8:11], 0 offen sc1\n s_mov_b64 exec, -1'])
    e.stamp(8)
    if sig3:
        w1_setup(e)
        e.take([l for i in range(4) for l in w1_step(i)], CFG['w0'])

def task_start(e, it):
    inv_lo = [IDX_LO.index(k) for k in range(14)]
    inv_hi = [IDX_HI.index(k) if k in IDX_HI else 15 for k in range(14)]
    l = e.lab('notask')
    kv, tot = list(e.vm), e.total
    d, c = f's{40 + 2 * it}', f's{41 + 2 * it}'
    e(f"""
    s_mov_b32 {c}, {OOB}
    s_lshr_b32 s35, s2, 1
    s_add_u32 s35, s35, {32 + 32 * it}
    s_cmp_lt_u32 s2, 64
    s_cselect_b32 s35, {'s2' if it == 0 else 112}, s35
    s_cmp_lt_u32 s37, 5
    s_cselect_b32 s35, 112, s35
    s_cmp_ge_u32 s35, 112
    s_cbranch_scc1 {l}
    s_bfe_u32 s62, s35, 0x20001
    s_lshr_b32 s63, s35, 3
    s_and_b32 s35, s35, 1
    s_mov_b32 s0, {nib(inv_lo) & 0xffffffff}
    s_mov_b32 s1, {nib(inv_lo) >> 32}
    s_mov_b32 s28, {nib(inv_hi) & 0xffffffff}
    s_mov_b32 s29, {nib(inv_hi) >> 32}
    s_cmp_lt_u32 s62, 3
    s_cselect_b64 s[0:1], s[0:1], s[28:29]
    s_lshl_b32 s3, s63, 2
    s_lshr_b64 s[0:1], s[0:1], s3
    s_and_b32 s0, s0, 15
    s_cmp_eq_u32 s0, 15
    s_cbranch_scc1 {l}
    s_mul_i32 s34, s62, 14
    s_add_u32 s0, s0, s34
    s_lshl_b32 s0, s0, 2
    s_add_u32 s0, s0, s20
    s_mul_i32 s33, s0, {8 * 1280}
    s_mul_i32 s3, s35, 640
    s_add_u32 s33, s33, s3
    s_lshl_b32 s35, s35, 2
    s_add_u32 s35, s35, s20
    s_mul_i32 {d}, s35, 56
    s_add_u32 {d}, {d}, s34
    s_add_u32 {d}, {d}, s63
    s_mul_i32 {d}, {d}, 5120
    s_add_u32 {d}, {d}, {W2B}
    s_lshl_b32 {c}, s35, 2
    s_add_u32 {c}, {c}, s62
    s_add_u32 {c}, {c}, {C_PRE2}
    s_lshl_b32 {c}, {c}, 8
    s_mul_i32 s34, s20, 5120
    s_add_u32 s34, s34, {T_STG + 20480 * it}
    v_lshrrev_b32 v{vT0}, 3, v{vLane}
    v_mul_u32_u24 v{vT0}, 1280, v{vT0}
    v_and_b32 v{vT2}, 7, v{vLane}
    v_lshl_add_u32 v{vT0}, v{vT2}, 4, v{vT0}
    """)
    for n in range(5):
        e(f's_add_u32 m0, s34, {896 * n}\n buffer_load_dwordx4 v{vT0}, s[12:15], s33 offen offset:{128 * n} {CFG["wpol"]} lds')
    e(f'{l}:')
    e.vm, e.total = kv, tot

def task_finish(e, loads):
    vPa, PR = 16, 176
    e(f"""
    v_bfe_u32 v{vT2}, v{vLane}, 2, 3
    v_lshlrev_b32 v{vT2}, 7, v{vT2}
    v_lshrrev_b32 v{vT3}, 5, v{vLane}
    s_movk_i32 s3, 5120
    v_mad_u32_u24 v{vT2}, v{vT3}, s3, v{vT2}
    v_add_u32 v{vT2}, {T_STG}, v{vT2}
    s_mul_i32 s3, s20, 10
    v_and_b32 v{vT3}, 3, v{vLane}
    v_add_u32 v{vPa}, s3, v{vT3}
    v_add_u32 v{vPa + 1}, 4, v{vPa}
    v_bfe_u32 v{vT3}, v{vLane}, 1, 1
    v_add3_u32 v{vPa + 2}, s3, v{vT3}, 8
    """)
    for k in range(3):
        e(f"""
        v_lshrrev_b32 v{vT3}, 3, v{vPa + k}
        v_and_b32 v{vPa + k}, 7, v{vPa + k}
        v_lshl_add_u32 v{vPa + k}, v{vPa + k}, 4, v{vT2}
        v_lshl_add_u32 v{vPa + k}, v{vT3}, 10, v{vPa + k}
        """)
    e(f'v_and_b32 v{vT3}, 1, v{vLane}\n v_lshl_add_u32 v{vPa + 2}, v{vT3}, 3, v{vPa + 2}\n s_waitcnt vmcnt({CFG["w0"]})\n s_barrier')
    e.stamp(9)
    for it in range(2):
        d = f's{40 + 2 * it}'
        items = [f'ds_read_b64_tr_b16 {vr(PR + 4 * a + 2 * v, 2)}, v{vPa + (a >> 1)} offset:{20480 * it + 8 * (a & 1) + 10240 * v}' for a in range(5) for v in range(2)]
        items += ['s_waitcnt lgkmcnt(0)']
        items += [f'buffer_store_dwordx4 {vr(PR + 4 * a, 4)}, v{vL16}, s[8:11], {d} offen offset:{1024 * a} {ST}' for a in range(4)]
        items += [f's_add_u32 {d}, {d}, 4096\n buffer_store_dwordx4 {vr(PR + 16, 4)}, v{vL16}, s[8:11], {d} offen {ST}\n s_nop 1']
        guarded(e, f's_cmp_lg_u32 s{41 + 2 * it}, {OOB}', items)
    e.stamp(10)
    e.take(loads, CFG['w1a'])
    e(f's_waitcnt vmcnt({CFG["w1a"]})\n v_mov_b32 v{vT2}, s41\n v_mov_b32 v{vT3}, s43')
    e.arrive(vT2, 1)
    e.arrive(vT3, 1)
    e.stamp(11)

def w1_finish(e, loads):
    e.take(loads)
    e('s_barrier')
    guarded(e, 's_cmp_lt_u32 s20, 2', w1_step(4))

def q_of_half(e, dst, half):
    e(f'''
    s_sub_u32 s3, 32, s60
    s_cmp_eq_u32 s60, 0
    s_cselect_b32 s3, 16, s3
    s_cmp_eq_u32 {half}, 0
    s_cselect_b32 {dst}, s60, s3
    ''')

def phase_b(e, w1l, w2l):
    aD, aM, a0, a4, vMk, vHo, vSo, vV1, vV0, vV4, vBar, vMk4 = range(16, 28)
    XR, AC, W, WM, W4, FB, tmp, H = 28, 44, 76, 92, 108, 124, 40, 124
    e(f'''
    v_lshlrev_b32 v{vT1}, 2, v{vG}
    v_xor_b32 v{vT1}, v{vT1}, v{vI}
    v_lshlrev_b32 v{vT1}, 4, v{vT1}
    v_lshl_add_u32 v{vT1}, v{vI}, 8, v{vT1}
    s_lshl_b32 s3, s20, 12
    s_add_u32 s3, s3, {X_STG}
    v_add_u32 v{vT1}, s3, v{vT1}
    ''')
    e(f'v_mov_b32 v{vBar}, v{vT1}')
    tot0 = e.total
    e(f'v_lshl_add_u32 v{vT0}, s20, 4, v{vI}\n v_lshl_add_u32 v{vT0}, v{vT0}, 5, s39')
    e(f'''
    v_cvt_f32_u32 v{vT0}, v{vT0}
    v_mul_f32 v{vT0}, {flit(1 / 2048)}, v{vT0}
    v_and_b32 v{vT1}, 1, v{vG}
    v_lshlrev_b32 v{vMk}, 31, v{vT1}
    v_lshrrev_b32 v{vT2}, 16, v{vMk}
    v_or_b32 v{vMk}, v{vMk}, v{vT2}
    v_lshrrev_b32 v{vT2}, 5, v{vLane}
    v_lshlrev_b32 v{vSo}, 6, v{vI}
    v_lshl_add_u32 v{vSo}, v{vT2}, 2, v{vSo}
    v_lshlrev_b32 v{vT2}, 3, v{vT2}
    v_cvt_f32_u32 v{FB}, v{vT2}
    v_bfe_u32 v{vT3}, v{vLane}, 2, 2
    v_add_u32 v{vT2}, v{vT2}, v{vT3}
    v_lshlrev_b32 v{a0}, 5, v{vT1}
    v_add_u32 v{a0}, {V_STG}, v{a0}
    v_lshl_add_u32 v{aD}, v{vT2}, 7, v{a0}
    v_lshl_add_u32 v{a0}, v{vT2}, 6, v{a0}
    v_lshrrev_b32 v{vT3}, 1, v{vT3}
    v_xor_b32 v{vT2}, 1, v{vT3}
    v_lshl_add_u32 v{aM}, v{vT2}, 6, v{aD}
    v_lshl_add_u32 v{aD}, v{vT3}, 6, v{aD}
    v_and_b32 v{vT2}, 3, v{vLane}
    v_xor_b32 v{vT3}, 3, v{vT2}
    v_lshl_add_u32 v{aD}, v{vT2}, 3, v{aD}
    v_lshl_add_u32 v{aM}, v{vT3}, 3, v{aM}
    v_lshl_add_u32 v{a4}, v{vT3}, 3, v{a0}
    v_lshl_add_u32 v{a0}, v{vT2}, 3, v{a0}
    v_cvt_f32_u32 v{vT1}, v{vT1}
    v_sub_f32 v{vT1}, 1.0, v{vT1}
    v_mul_f32 v{vT1}, {flit(0.25)}, v{vT1}
    v_fma_f32 v{vT1}, v{vT0}, v{FB}, v{vT1}
    s_cmp_le_u32 s38, 2
    s_cselect_b32 s3, 0, -1
    s_cselect_b64 s[40:41], -1, 0
    v_and_b32 v{vMk4}, s3, v{vMk}
    v_cndmask_b32 v{a4}, v{a4}, v{a0}, s[40:41]
    ''')
    left = [w1l.pop() for _ in range(CFG['w1left'])][::-1]
    mx = Mix(e, w1l, CFG['bmix'])
    for ks in range(4):
        for n in range(8):
            mx(f'v_fmamk_f32 v{FB + n}, v{vT0}, {flit(16 * ks + n)}, v{vT1}')
        for n in range(8):
            mx(f'v_sin_f32 v{FB + n}, v{FB + n}')
        for k in range(4):
            mx(f'v_cvt_pk_bf16_f32 v{W + 4 * ks + k}, v{FB + 2 * k}, v{FB + 2 * k + 1}')
    for k in range(16):
        mx(f'v_xor_b32 v{WM + k}, v{vMk}, v{W + k}\n v_xor_b32 v{W4 + k}, v{vMk4}, v{W + k}')
    e(f's_waitcnt vmcnt({e.total - tot0 + CFG["w0"]})')
    for r in range(4):
        e((f'v_xor_b32 v{vBar}, {16 if r % 2 else 48}, v{vBar}\n' if r else '') + f'ds_read_b128 {vr(XR + 4 * r, 4)}, v{vBar}', tag='xr')
    e.wait(lg='xr')
    for r in range(4):
        for k in range(8):
            d = AC + 4 * k + (r if k <= 4 else 3 - r)
            x = XR + 4 * r + k // 2
            mx(f'v_lshlrev_b32 v{d}, 16, v{x}' if k % 2 == 0 else f'v_and_b32 v{d}, 0xffff0000, v{x}')
    e(f'''
    s_lshl_b32 s40, s37, 13
    s_lshl_b32 s3, s36, 6
    s_add_u32 s40, s40, s3
    s_xor_b32 s41, s40, 64
    s_sub_u32 s42, 4, s37
    s_lshl_b32 s42, s42, 13
    s_add_u32 s42, s42, s3
    s_xor_b32 s43, s3, 64
    s_cmp_eq_u32 s60, 0
    s_cselect_b32 s41, s42, s41
    s_cselect_b32 s42, s3, s43
    s_sub_u32 s43, 4, s38
    s_cmp_le_u32 s38, 2
    s_cselect_b32 s42, s3, s42
    s_cselect_b32 s43, s38, s43
    s_lshl_b32 s43, s43, 13
    s_add_u32 s42, s42, s43
    v_lshrrev_b32 v{vT0}, 3, v0
    v_and_b32 v{vT1}, 3, v0
    v_lshlrev_b32 v{vT1}, 4, v{vT1}
    v_lshl_add_u32 v{vV1}, v{vT0}, 7, v{vT1}
    v_lshrrev_b32 v{vT2}, 2, v0
    v_lshl_add_u32 v{vV0}, v{vT2}, 7, v{vT1}
    v_lshrrev_b32 v{vT0}, 1, v{vT0}
    v_xor_b32 v{vT0}, v{vT0}, v{vT2}
    v_and_b32 v{vT0}, 1, v{vT0}
    v_cmp_eq_u32 vcc, 0, v{vT0}
    v_mov_b32 v{vT1}, s41
    v_mov_b32 v{vT2}, s40
    v_cndmask_b32 v{vT1}, v{vT1}, v{vT2}, vcc
    v_add_u32 v{vV1}, v{vV1}, v{vT1}
    v_add_u32 v{vV4}, s42, v{vV0}
    v_add_u32 v{vV0}, s40, v{vV0}
    s_mul_i32 s40, s60, 204800
    s_add_u32 s40, s40, {VB}
    s_add_u32 s41, s52, {V_STG}
    v_lshlrev_b32 v{vMk}, 4, v0
    v_add_u32 v{vMk}, {V_STG}, v{vMk}
    s_lshl_b32 s3, s36, 2
    s_lshl_b32 s42, s60, 3
    s_add_u32 s42, s42, s3
    s_add_u32 s42, s42, s20
    s_lshr_b32 s45, s42, 1
    s_add_u32 s45, s45, {C_BC}
    s_lshl_b32 s45, s45, 8
    s_lshl_b32 s43, s42, 7
    s_add_u32 s43, s43, s38
    s_lshl_b32 s43, s43, 3
    s_add_u32 s43, s43, {SB}
    s_cmp_eq_u32 s38, 4
    s_cselect_b32 s34, 0xffff0000, 0
    s_mov_b32 s35, s34
    v_cndmask_b32 v{vT0}, 0, 8, s[34:35]
    v_add_u32 v{vSo}, v{vSo}, v{vT0}
    s_mul_i32 s42, s42, 20480
    s_lshl_b32 s3, s38, 12
    s_add_u32 s42, s42, s3
    s_add_u32 s42, s42, {HB}
    v_lshlrev_b32 v{vHo}, 4, v{vI}
    v_lshl_add_u32 v{vHo}, v{vG}, 10, v{vHo}
    s_and_b32 s3, s2, 7
    s_lshl_b32 s3, s3, 4
    v_add_u32 v{vBar}, s3, v{vLane}
    v_lshlrev_b32 v{vBar}, 8, v{vBar}
    ''')
    def swap4():
        l = e.lab('sw')
        e(f's_cmp_le_u32 s38, 2\n s_cbranch_scc1 {l}')
        e(f'v_swap_b32 v{AC + 16}, v{AC + 19}\n v_swap_b32 v{AC + 17}, v{AC + 18}\n {l}:')
    swap4()
    setup_c(e)
    e.take(w1l)
    e.stamp(9)
    e('s_cmp_lg_u32 s20, 0\n s_cbranch_scc1 LB_nopoll')
    keep = list(e.vm)
    e.spin(vT0, vBar, 16, '0xffff')
    e('LB_nopoll:\n s_barrier')
    e.vm = keep
    e.stamp(10)
    for va, src, dst in [(vV0, 0, 0), (vV1, 40960, 4096), (vV1, 45056, 8192), (vV1, 81920, 12288), (vV1, 86016, 16384)]:
        e(f's_add_u32 s3, s40, {src}\n s_add_u32 m0, s41, {dst}')
        e(f'buffer_load_dwordx4 v{va}, s[8:11], s3 offen {LD} lds', tag='V')
    for k, (va, src) in enumerate([(vV1, 122880), (vV1, 126976), (vV4, 163840)]):
        e(f's_add_u32 s3, s40, {src}\n buffer_load_dwordx4 {vr(XR + 4 * k, 4)}, v{va}, s[8:11], s3 offen {LD}', tag='V2')
    pend = left
    assert CFG['q1'] + CFG['q2'] <= len(left)
    def take(k):
        while k > 0 and pend:
            if pend[0][0] == 'PRE2':
                pend.pop(0); e.confirm(vPk2, vPre2, 's47', 'pk2')
            else:
                e.take(pend, 1); k -= 1
    take(CFG['q1'])
    e.wait(vm='V')
    e('s_barrier')
    e.stamp(11)
    e.stamp(1, 'F')
    seq = [(b, ks) for b in (0, 1, 7, 2, 6, 3, 5, 4) for ks in range(4)]
    NB = 7
    def rd(n):
        b, ks = seq[n]
        f = FB + 4 * (n % 8)
        for u in range(2):
            if b in (0, 4):
                e(f'ds_read_b64_tr_b16 {vr(f + 2 * u, 2)}, v{a0 if b == 0 else a4} offset:{1024 * ks + 256 * u}', tag=f'f{n}')
            else:
                c = b if b < 4 else 8 - b
                e(f'ds_read_b64_tr_b16 {vr(f + 2 * u, 2)}, v{aD if b < 4 else aM} offset:{(12288 if c == 2 else 4096) + 2048 * ks + 512 * u}', tag=f'f{n}')
    for n in range(NB):
        rd(n)
    nxt = NB
    for n, (b, ks) in enumerate(seq):
        if n in (1, 12, 15, 20):
            e.stamp({1: 2, 12: 3, 15: 4, 20: 5}[n], 'F')
        if n == 12:
            e.wait(vm='V2')
            e('s_barrier')
            for k, o in enumerate((4096, 8192, 0)):
                e(f'ds_write_b128 v{vMk}, {vr(XR + 4 * k, 4)} offset:{o}', tag='vw')
        if n == 15:
            e.wait(lg='vw')
            e('s_barrier')
        e.wait(lg=f'f{n}')
        w = W if b < 4 else (W4 if b == 4 else WM)
        e(f'{MF} {vr(AC + 4 * b, 4)}, {vr(FB + 4 * (n % 8), 4)}, {vr(w + 4 * ks, 4)}, {vr(AC + 4 * b, 4)}')
        while nxt <= n + NB and nxt < len(seq) and (nxt < 20 or n >= 15):
            rd(nxt); nxt += 1
        if n % 3 == 1 and n // 3 < CFG['q2']:
            take(1)
        if n == CFG['pk2at']:
            e.peek(vPk2, vPre2, 'pk2')
    while any(t == 'w1' for x, t in pend):
        take(1)
    e.stamp(6, 'F')
    e(f'v_mov_b32 v{tmp}, 0\n v_mov_b32 v{tmp + 1}, 0\n v_mov_b32 v{tmp + 2}, 0\n v_mov_b32 v{tmp + 3}, 0\n s_nop 3')
    swap4()
    for r in range(4):
        for k in range(4):
            lo = AC + 8 * k + (r if 2 * k <= 4 else 3 - r)
            hi = AC + 8 * k + 4 + (r if 2 * k + 1 <= 4 else 3 - r)
            e(f'v_cvt_pk_bf16_f32 v{H + 4 * r + k}, v{lo}, v{hi}')
        e(f'buffer_store_dwordx4 {vr(H + 4 * r, 4)}, v{vHo}, s[8:11], s42 offen offset:{256 * r} {ST}', tag='hst')
        for k in range(4 * r, 4 * r + 4):
            s, q = tmp + 2 * (k % 2), tmp + 2 * (k % 2) + 1
            e(f'v_dot2_f32_bf16 v{s}, v{H + k}, s51, v{s}\n v_dot2_f32_bf16 v{q}, v{H + k}, v{H + k}, v{q}')
    e.stamp(7, 'F')
    e(f'''
    v_add_f32 v{tmp}, v{tmp}, v{tmp + 2}
    v_add_f32 v{tmp + 1}, v{tmp + 1}, v{tmp + 3}
    v_permlane32_swap_b32 v{tmp}, v{tmp + 1}
    v_add_f32 v{tmp}, v{tmp}, v{tmp + 1}
    v_mov_b32 v{tmp + 1}, v{tmp}
    v_permlane16_swap_b32 v{tmp}, v{tmp + 1}
    v_add_f32 v{tmp}, v{tmp}, v{tmp + 1}
    v_mov_b32 v{vBar}, s45
    v_cndmask_b32 v{tmp}, v{tmp}, 0, s[34:35]
    ''')
    e(f'buffer_store_dword v{tmp}, v{vSo}, s[8:11], s43 offen {ST}', tag='hst')
    e.stamp(12)
    e.stamp(7, 'E')
    e.stamp(8, 'F')
    e.wait(vm='w1')
    e('s_barrier')
    e.stamp(8, 'E')
    def arrive():
        e.wait(vm='hst')
        e.arrive(vBar, 1)
        e.confirm(vPk2, vPre2, 's47', 'pk2')
    return w2l, arrive

CS = 16
vWp, vWs, vBC, vSt, vSa, vCs = 168, 171, 174, 175, 167, 156
WIN = 61440 - 61440 % W_K
def w1_frag(dst, slot, k, tag):
    b, o = divmod(W_K * k + (32 * slot if slot < 6 else 0), WIN)
    v = (vWp if slot < 6 else vWs) + b
    return [(f'ds_read_b64_tr_b16 {vr(dst + 2 * h, 2)}, v{v} offset:{o + 1792 * h}', tag) for h in range(2)]

def setup_c(e):
    e(f"""
    v_lshrrev_b32 v{vT0}, 5, v{vLane}
    v_bfe_u32 v{vT1}, v{vLane}, 2, 3
    v_lshl_add_u32 v{vT0}, v{vT0}, 4, v{vT1}
    v_mul_u32_u24 v{vT0}, 224, v{vT0}
    v_and_b32 v{vT1}, 3, v{vLane}
    v_lshl_add_u32 v{vT0}, v{vT1}, 3, v{vT0}
    s_lshl_b32 s3, s31, 5
    v_add_u32 v{vWp}, s3, v{vT0}
    v_add_u32 v{vWp + 1}, {WIN}, v{vWp}
    v_add_u32 v{vWp + 2}, {2 * WIN}, v{vWp}
    s_cmp_eq_u32 s31, 0
    s_cselect_b32 s3, 192, 0
    v_add_u32 v{vWs}, s3, v{vT0}
    v_add_u32 v{vWs + 1}, {WIN}, v{vWs}
    v_add_u32 v{vWs + 2}, {2 * WIN}, v{vWs}
    s_lshl_b32 s3, s20, 6
    s_cmp_eq_u32 s20, 3
    s_cselect_b64 vcc, -1, 0
    s_cselect_b32 s0, {OOB}, 0
    v_or_b32 v{vL16x}, s0, v{vL16}
    """)
    for b in range(3):
        e(f'v_add_u32 v{vCs + b}, s3, v{vWp + b}\n v_cndmask_b32 v{vCs + b}, v{vCs + b}, v{vWs + b}, vcc')
    e(f"""
    v_lshlrev_b32 v{vSa}, 6, v{vI}
    v_lshl_add_u32 v{vSa}, v{vG}, 4, v{vSa}
    v_cmp_le_u32 vcc, 48, v{vLane}
    v_cndmask_b32 v{vT0}, 0, v{vOne}, vcc
    v_lshl_or_b32 v{vSa}, v{vT0}, 31, v{vSa}
    s_lshl_b32 s0, s60, 3
    s_lshl_b32 s3, s20, 1
    s_add_u32 s0, s0, s3
    s_lshl_b32 s23, s0, 10
    s_add_u32 s23, s23, {SB}
    s_mul_i32 s21, s0, 20480
    s_add_u32 s21, s21, {HB}
    s_add_u32 s22, s21, 20480
    s_lshr_b32 s3, s0, 1
    s_add_u32 s3, s3, {C_BC}
    s_lshl_b32 s3, s3, 8
    v_mov_b32 v{vBC}, s3
    s_lshr_b32 s1, s61, 2
    s_cmp_lt_u32 s1, 3
    s_cselect_b32 s3, 0, {OOB}
    v_or_b32 v{vSt}, s3, v{vL16}
    s_and_b32 s48, s0, 0xfc
    s_add_u32 s48, s48, s1
    s_lshl_b32 s48, s48, 1
    s_add_u32 s48, s48, {C_CD}
    s_lshl_b32 s48, s48, 8
    s_mul_i32 s1, s1, 14
    s_mul_i32 s0, s0, 56
    s_add_u32 s0, s0, s1
    s_lshl_b32 s0, s0, 10
    s_add_u32 s0, s0, {H1B}
    s_and_b32 s1, s61, 3
    s_lshl_b32 s12, s1, 11
    s_add_u32 s12, s12, s0
    s_add_u32 s13, s12, 1024
    s_add_u32 s14, s1, 10
    s_lshl_b32 s14, s14, 10
    s_add_u32 s14, s14, s0
    s_lshr_b32 s15, s1, 1
    s_add_u32 s15, s15, 8
    s_lshl_b32 s15, s15, 10
    s_add_u32 s15, s15, s0
    s_lshl_b32 s3, s31, 3
    s_add_u32 s15, s15, s3
    """)

def colsums(e, pend, arrive):
    ONES, AC, FB = 44, 48, 56
    e.stamp(9, 'E')
    for k in range(4):
        e(f'v_mov_b32 v{ONES + k}, s51')
    def rd(k):
        b, o = divmod(W_K * k, WIN)
        for u in range(2):
            for h in range(2):
                e(f'ds_read_b64_tr_b16 {vr(FB + 8 * (k % 4) + 4 * u + 2 * h, 2)}, v{vCs + b} offset:{o + 32 * u + 1792 * h}', tag=f'c{k}')
    for k in range(3):
        rd(k)
    for k in range(20):
        if k == CFG['bat']:
            e.stamp(10, 'E')
            if arrive:
                arrive()
            e.stamp(11, 'E')
            e.take(pend, CFG['q3'])
        e.wait(lg=f'c{k}')
        for u in range(2):
            e(f'{MF} {vr(AC + 4 * u, 4)}, {vr(FB + 8 * (k % 4) + 4 * u, 4)}, {vr(ONES, 4)}, {vr(AC + 4 * u, 4) if k else 0}')
        if k + 3 < 20:
            rd(k + 3)
        if k > CFG['bat'] and k % 2 == 0:
            e.take(pend, CFG['q5'])
    e(f's_lshl_b32 s3, s20, 11\n s_add_u32 s3, s3, {R_CS}\n v_add_u32 v{vT0}, s3, v{vL16}')
    e(f'ds_write_b128 v{vT0}, {vr(AC, 4)}\n ds_write_b128 v{vT0}, {vr(AC + 4, 4)} offset:1024')
    e(f'v_add_u32 v{vT0}, {R_CS}, v{vL16}\n s_waitcnt lgkmcnt(0)\n s_barrier')
    for a in range(7):
        e(f'ds_read_b128 {vr(CS + 4 * a, 4)}, v{vT0} offset:{1024 * a}')
    e.take(pend, CFG['q6'])
    e('s_waitcnt lgkmcnt(0)')

def pair_reduce(a, b):
    return f"""
    v_permlane32_swap_b32 v{a}, v{b}
    v_add_f32 v{a}, v{a}, v{b}
    v_mov_b32 v{b}, v{a}
    v_permlane16_swap_b32 v{a}, v{b}
    v_add_f32 v{a}, v{a}, v{b}
    v_mov_b32 v{b}, v{a}
    v_permlane32_swap_b32 v{a}, v{b}
    """

def phase_c(e, pend):
    vM = 12
    AC, FB, ST0, PK = 44, 100, 132, 140
    NF = 8
    acc = lambda a, rt: AC + 8 * a + 4 * rt
    def rd(seq, n):
        k, a = seq[n]
        return w1_frag(FB + 4 * ((n + (off2 if seq is seq2 else 0)) % NF), a, k, f'w{n}')
    p1, p2 = ((0, 1, 2, 3, 6), (4, 5)) if CFG['split'] == 5 else ((0, 1, 2, 3), (4, 5, 6))
    seq1 = [(k, a) for k in range(20) for a in p1]
    seq2 = [(k, a) for k in range(20) for a in p2]
    off2 = len(seq1) % NF
    for n in range(NF - 1):
        e.take(rd(seq1, n))
    e.stamp(13)
    e.spin(vT1, vBC, 10, 1)
    e.stamp(14)
    for rt in range(2):
        e(f'buffer_load_dwordx4 {vr(ST0 + 4 * rt, 4)}, v{vSa}, s[8:11], s23 offen offset:{1024 * rt} {LD}', tag='st')
    hl = []
    for k in range(20):
        for rt in range(2):
            t = f'buffer_load_dwordx4 {vr(8 * k + 4 * rt, 4, "a")}, v{vOob if CFG["skiph"] else vL16}, s[8:11], s{21 + rt} offen offset:{1024 * (k % 4)} {LD}'
            if k % 4 == 3:
                t += f'\n s_add_u32 s{21 + rt}, s{21 + rt}, 4096'
            hl.append((t, f'h{k}'))
    first = [hl.pop(0) for _ in range(CFG['h0'])]
    e.take(first, 3)
    Mix(e, first, 10)(setup_d())
    e.take(first)
    e.wait(vm='st')
    e(f'v_add_f32 v{vM}, v{ST0}, v{ST0 + 2}\n v_add_f32 v{vM + 1}, v{ST0 + 4}, v{ST0 + 6}')
    e(pair_reduce(vM, vM + 1))
    e(f"""
    v_mul_f32 v{vM}, {flit(-1 / 640)}, v{vM}
    v_mul_f32 v{vM + 1}, {flit(-1 / 640)}, v{vM + 1}
    v_cvt_pk_bf16_f32 v{vM + 1}, v{vM}, v{vM + 1}
    v_lshlrev_b32 v{vM}, 16, v{vM + 1}
    v_and_b32 v{vM + 1}, 0xffff0000, v{vM + 1}
    """)
    init = lambda a: [(f'v_pk_mul_f32 {vr(acc(a, rt) + 2 * k, 2)}, {vr(CS + 4 * a + 2 * k, 2)}, {vr(vM, 2)} op_sel:[0,{rt}] op_sel_hi:[1,{rt}]', None)
                      for rt in range(2) for k in range(2)]
    for a in p1:
        e.take(init(a))
    later = [t for a in p2 for t in init(a)]
    npk = [0]
    def epi(slots, rt, so, tag):
        out = []
        p = PK + 4 * (npk[0] % 4); npk[0] += 1
        for n, a in enumerate(slots):
            for k in range(2):
                out.append((f'v_cvt_pk_bf16_f32 v{p + 2 * n + k}, v{acc(a, rt) + 2 * k}, v{acc(a, rt) + 2 * k + 1}', None))
        out += [(f'v_pk_max_i16 v{p + k}, v{p + k}, 0', None) for k in range(2 * len(slots))]
        t = f's_add_u32 {so}, {so}, {56 * 1024}\n' if rt else ''
        out.append((t + (f'buffer_store_dwordx4 {vr(p, 4)}, v{vL16}, s[8:11], {so} offen {ST}' if len(slots) == 2 else
                         f'buffer_store_dwordx2 {vr(p, 2)}, v{vSt}, s[8:11], {so} offen {ST}'), tag))
        return out
    def gemm(seq, nxt, hook):
        for n, (k, a) in enumerate(seq):
            e.wait(vm=f'h{k}', lg=f'w{n}')
            m = n + NF - 1
            reads = rd(seq, m) if m < len(seq) else (rd(nxt, m - len(seq)) if nxt else [])
            for rt in range(2):
                d = vr(acc(a, rt), 4)
                e(f'{MF} {d}, {vr(FB + 4 * ((n + (off2 if seq is seq2 else 0)) % NF), 4)}, {vr(8 * k + 4 * rt, 4, "a")}, {d}')
                e.take(reads, 1)
                hook(n, k, rt)
    def hook1(n, k, rt):
        if rt == 1:
            due = (n + 1) * 2 // len(p1) - n * 2 // len(p1)
            e.take(hl if due else later, 1)
    gemm(seq1, seq2, hook1)
    assert not hl and not later
    e.stamp(15)
    fill = []
    for (slots, so) in (((0, 1), 's12'), ((2, 3), 's13')) + ((((6,), 's15'),) if 6 in p1 else ()):
        for rt in range(2):
            fill += epi(slots, rt, so, 'u1')
    free_after = {8: 8, 9: 10, 10: 13, 11: 15, 12: 18, 13: 99}
    def hook2(n, k, rt):
        if fill:
            if n >= 2:
                e.take(fill, CFG['cfill'])
        elif rt == 1 and pend and n % CFG['c2'] == 0:
            if k > free_after.get(int(pend[0][1][3:]), -1):
                e.take(pend, 1)
        if n == CFG['u1at'] and rt == 1:
            e.wait(vm='u1')
            e(f'v_mov_b32 v{vT0}, s48')
            e.arrive(vT0, 1)
    gemm(seq2, None, hook2)
    for so, slots in (('s14', (4, 5)),) + ((('s15', (6,)),) if 6 in p2 else ()):
        for rt in range(2):
            e.take(epi(slots, rt, so, 'u2'))
    e.stamp(16)

vDm, vDh, vOo, vOo2, vDw, vRd, vC1, vPk = 156, 157, 14, 15, 158, 161, 162, 163
def setup_d():
    t = d_role('s31', 's30') + f"""
    s_lshl_b32 s33, s60, 3
    s_lshl_b32 s34, s30, 2
    s_add_u32 s33, s33, s34
    s_add_u32 s38, s33, s20
    s_lshl_b32 s3, s38, 1
    s_add_u32 s3, s3, {C_CD}
    s_lshl_b32 s3, s3, 8
    v_mov_b32 v{vC1}, s3
    s_mul_i32 s39, s20, 14
    """
    for r in range(4):
        t += f"""
        s_add_u32 s3, s20, {r + 1}
        s_and_b32 s3, s3, 3
        s_mul_i32 s40, s3, 15360
        s_add_u32 s3, s3, s33
        s_mul_i32 s3, s3, 56
        s_add_u32 s3, s3, s39
        s_lshl_b32 s3, s3, 10
        s_add_u32 s{34 + r}, s3, {H1B}
        v_add_u32 v{vDw + r}, s40, v{vL16}
        """
    t += f"""
    v_lshlrev_b32 v{vDh}, 4, v{vI}
    v_lshl_add_u32 v{vDm}, v{vG}, 8, v{vDh}
    v_lshrrev_b32 v{vT0}, 5, v{vLane}
    v_lshl_add_u32 v{vDh}, v{vT0}, 8, v{vDh}
    v_and_b32 v{vT0}, 1, v{vG}
    v_lshl_add_u32 v{vDh}, v{vT0}, 3, v{vDh}
    s_lshl_b32 s41, s38, 10
    s_add_u32 s41, s41, {SB}
    s_mul_i32 s40, s38, 20480
    s_mul_i32 s3, s31, 2560
    s_add_u32 s40, s40, s3
    s_add_u32 s40, s40, {HB}
    s_sub_u32 s3, 32, s60
    s_cmp_eq_u32 s60, 0
    s_cselect_b32 s3, 16, s3
    s_cmp_eq_u32 s30, 0
    s_cselect_b32 s39, s60, s3
    v_lshl_add_u32 v{vOo}, s20, 4, v{vI}
    v_lshl_add_u32 v{vOo}, v{vOo}, 5, s39
    v_mul_u32_u24 v{vOo}, 1280, v{vOo}
    v_lshl_add_u32 v{vOo2}, v{vG}, 3, v{vOo}
    v_lshl_add_u32 v{vOo}, v{vG}, 4, v{vOo}
    s_mul_i32 s39, s31, 160
    """
    return t

def h1_load(n, rt):
    return (f's_add_u32 s3, s{34 + rt}, {4096 * (n // 4)}\n' +
            f'buffer_load_dwordx4 {ringreg(n, rt)}, v{vOob if CFG["skiph1"] else vL16x if n in (8, 9) else vL16}, s[8:11], s3 offen offset:{1024 * (n % 4)} {LD}',
            f'r{n}_{rt}' if n >= 10 else f'r{n}')

def phase_d(e, pend):
    vM, vR, vW = 11, 12, vDw
    AC, ST0, HR, HF, PB = 16, 104, 108, 176, 196
    misc = [(f'buffer_load_dwordx4 {vr(ST0, 4)}, v{vSa}, s[8:11], s41 offen {LD}', 'st'),
            (f'buffer_load_dwordx4 {vr(HR, 4)}, v{vDm}, s[8:11], s40 offen {LD}', 'st'),
            (f'buffer_load_dwordx4 {vr(HR + 4, 4)}, v{vDm}, s[8:11], s40 offen offset:1024 {LD}', 'st'),
            (f'buffer_load_dwordx2 {vr(HR + 8, 2)}, v{vDh}, s[8:11], s40 offen offset:2048 {LD}', 'st')]
    e(f's_add_u32 s48, s48, 256\n v_mov_b32 v{vT0}, s48')
    e.take(pend, CFG['d0'])
    e.wait(vm='u2')
    e.arrive(vT0, 1)
    e.take(pend, CFG['d1'])
    e.spin(vPk, vC1, 8, 1)
    e.stamp(17)
    stream = [h1_load(n, rt) for n in range(10) for rt in range(4)] + [h1_load(n, rt) for rt in range(4) for n in range(10, 14)]
    e.take(stream, 12)
    e(f'v_add_u32 v{vC1}, 256, v{vC1}')
    extra = pend + misc
    per = -(-len(extra) // 8)
    while extra and extra[0][1].startswith('w2_') and int(extra[0][1][3:]) < 2:
        e.take(extra, 1)
    dacc = lambda rt, a: vr(AC + 20 * rt + 4 * a, 4)
    for n in range(10):
        p2 = 7 if CFG['split'] == 5 else 5
        if n == p2 - 1:
            e.peek(vPk, vC1, 'pk')
        if n == p2:
            e.confirm(vPk, vC1, 8, 'pk')
        if n == 8:
            e('s_barrier')
        fill = [stream.pop(0) for _ in range(4)] + [extra.pop(0) for _ in range(min(per, len(extra)))]
        assert not any(t == f'w2_{n}' for _, t in fill + extra)
        e.wait(vm=(f'w2_{n}', f'r{n}'))
        step = max(1, 20 // len(fill))
        for rt in range(4):
            for a in range(5):
                e(f'{MF} {dacc(rt, a)}, {w2reg(n, a)}, {ringreg(n, rt)}, {dacc(rt, a) if n else 0}')
                if (5 * rt + a) % step == 0:
                    e.take(fill, 1)
        e.take(fill)
    assert not extra
    e.stamp(9, 'D')
    prep = [('WAITST', None), (f'v_add_f32 v{vM}, v{ST0}, v{ST0 + 2}', None), (f'v_add_f32 v{vR}, v{ST0 + 1}, v{ST0 + 3}', None)]
    prep += [(l.strip(), None) for l in (pair_reduce(vM, vR) + f"""
    v_mul_f32 v{vM}, {flit(1 / 640)}, v{vM}
    v_mul_f32 v{vR}, {flit(1 / 640)}, v{vR}
    v_fma_f32 v{vR}, -v{vM}, v{vM}, v{vR}
    v_max_f32 v{vR}, 0, v{vR}
    v_add_f32 v{vR}, {flit(1e-5)}, v{vR}
    v_rsq_f32 v{vR}, v{vR}
    """).split('\n') if l.strip()]
    for k in range(10):
        prep += [(f'v_lshlrev_b32 v{HF + 2 * k}, 16, v{HR + k}', None), (f'v_and_b32 v{HF + 2 * k + 1}, 0xffff0000, v{HR + k}', None)]
    writes = []
    for rt in range(4):
        for n in range(10, 14):
            e.wait(vm=(f'w2_{n}', f'r{n}_{rt}'))
            for a in range(5):
                e(f'{MF} {dacc(rt, a)}, {w2reg(n, a)}, {ringreg(n, rt)}, {dacc(rt, a)}')
                if stream and a == 0:
                    e.take(stream, 1)
                elif writes and n > 10 and a % 2 == 0:
                    e.take(writes, 1)
                elif prep and rt > 0:
                    if prep[0][0] == 'WAITST':
                        prep.pop(0); e.wait(vm='st')
                    e.take(prep, 1)
        e.take(writes)
        if rt < 3:
            writes = [(f'ds_write_b128 v{vW + rt}, {dacc(rt, a)} offset:{5120 * rt + 1024 * a}', None) for a in range(5)]
    e.take(prep)
    e('s_waitcnt lgkmcnt(0)\n s_barrier')
    e.stamp(10, 'D')
    for a in range(5):
        for r in range(3):
            e(f'ds_read_b128 {vr(PB + 12 * a + 4 * r, 4)}, v{vRd} offset:{5120 * r + 1024 * a}', tag=f'q{a}')
    for a in range(5):
        e.wait(lg=f'q{a}')
        o, q = AC + 60 + 4 * a, PB + 12 * a
        for k in (0, 2):
            e(f'v_pk_add_f32 {vr(o + k, 2)}, {vr(o + k, 2)}, {vr(q + k, 2)}\n v_pk_add_f32 {vr(q + 4 + k, 2)}, {vr(q + 4 + k, 2)}, {vr(q + 8 + k, 2)}')
        for k in (0, 2):
            e(f'v_pk_add_f32 {vr(o + k, 2)}, {vr(o + k, 2)}, {vr(q + 4 + k, 2)}')
        for k in (0, 2):
            e(f'v_pk_fma_f32 {vr(o + k, 2)}, {vr(o + k, 2)}, {vr(vR, 2)}, {vr(HF + 4 * a + k, 2)} op_sel_hi:[1,0,1]')
        for k in range(2):
            e(f'v_cvt_pk_bf16_f32 v{HR + 2 * a + k}, v{o + 2 * k}, v{o + 2 * k + 1}')
        if a in (1, 3):
            e(f'buffer_store_dwordx4 {vr(HR + 2 * a - 2, 4)}, v{vOo}, s[16:19], s39 offen offset:{32 * (a - 1)} {CFG["opol"]}')
    e(f'buffer_store_dwordx2 {vr(HR + 8, 2)}, v{vOo2}, s[16:19], s39 offen offset:128 {CFG["opol"]}')
    e.stamp(11, 'D')

def dump_stamps(e, nst):
    if not CFG['stamps']:
        return
    e(f'''
    s_waitcnt vmcnt(0)
    {CFG["clk"]} s[0:1]
    s_lshl_b32 s3, s2, 2
    s_add_u32 s3, s3, s20
    s_lshl_b32 s3, s3, 7
    s_add_u32 s3, s3, {TSB}
    s_waitcnt lgkmcnt(0)
    s_mov_b64 exec, 1
    v_mov_b32 v0, 0
    ''')
    if CFG['dbgwg'] >= 0:
        e(f's_cmp_lg_u32 s2, {CFG["dbgwg"]}\n s_cbranch_scc1 L_done\n s_cmp_lg_u32 s20, 0\n s_cbranch_scc1 L_done')
        for k, n in enumerate([1, 2, 3, 5, 7, 8, 9, 10, 11, 12, 14, 15, 16, 17]):
            e(f's_sub_u32 s3, s{64 + 2 * n}, s64\n v_mov_b32 v1, s3\n buffer_store_dword v1, v0, s[56:59], 0 offen offset:{4 * k + 32}')
        e(f's_sub_u32 s3, s0, s64\n v_mov_b32 v1, s3\n buffer_store_dword v1, v0, s[56:59], 0 offen offset:88')
        return
    for n in range(nst):
        e(f'v_mov_b32 v1, s{64 + 2 * n}\n buffer_store_dword v1, v0, s[8:11], s3 offen offset:{4 * n}')
    e(f'v_mov_b32 v1, s0\n buffer_store_dword v1, v0, s[8:11], s3 offen offset:{4 * nst}')

def build():
    e = K()
    phase_a(e)
    e.vm = ['old']
    w1l = [l for i in range(4) for l in w1_step(i)][CFG['w0']:]
    early = [l for n in range(8) for l in w2_loads(n)]
    late = [l for n in range(8, 14) for l in w2_loads(n)]
    e('s_cmp_ge_u32 s37, 5\n s_cbranch_scc1 LB_idle')
    tot0 = e.total
    pend, arrive = phase_b(e, list(w1l) + w1_step(4), list(early))
    done = len(early) - len(pend)
    rest = list(pend)
    colsums(e, pend, arrive)
    e('s_branch LB_join\n LB_idle:')
    e.vm, e.lg = [], []
    e.total = tot0
    w1l = list(w1l)
    task_finish(e, w1l)
    setup_c(e)
    e.take(w1l)
    e('s_barrier')
    e.take(w1_step(4))
    e.peek(vPk2, vPre2, 'pk2')
    e.confirm(vPk2, vPre2, 's47', 'pk2', slp=CFG['slpi'])
    e.stamp(12)
    e('s_barrier')
    e.take(early[:done])
    colsums(e, rest, None)
    e('LB_join:')
    e.vm = []
    pend += late
    phase_c(e, pend)
    phase_d(e, pend)
    if CFG['padto'] and CFG['padat'] == 18:
        e(f'Lpad:\n s_memrealtime s[96:97]\n s_waitcnt lgkmcnt(0)\n s_sub_u32 s96, s96, s98\n s_cmp_lt_u32 s96, {CFG["padto"]}\n s_cbranch_scc1 Lpad')
    dump_stamps(e, 18)
    e('L_done:\n s_endpgm')
    print('instructions', len(e.ins), 'nops', e.nops, file=sys.stderr)
    name = NAME + '_kernel'
    hdr = open('cdna_kernels/' + NAME + '.s.ref').read().split('; Override launch')[0]
    return (hdr + '; @launch grid=(256,1,1) block=(256,1,1) lds=163840\n.amdgcn_target "amdgcn-amd-amdhsa--gfx950"\n.text\n'
            f'.globl {name}\n.p2align 8\n.type {name},@function\n{name}:\n' + e.text() +
            '\n.section .rodata,"a"\n.p2align 6\n' + kd(name, 512, 102, 256))

if __name__ == '__main__':
    for a in sys.argv[2:]:
        k, _, v = a.partition('=')
        assert k in CFG, k
        CFG[k] = (int(v) if v.lstrip('-').isdigit() else v.replace('none', '')) if v else True
    open(sys.argv[1], 'w').write(build())
```
